```python
import torch

def _softmax(x, axis=-1):
    return torch.softmax(x, dim=axis)
def _gelu(x):
    return torch.nn.functional.gelu(x, approximate="tanh")
def _silu(x):
    return torch.nn.functional.silu(x)
def _sigmoid(x):
    return torch.sigmoid(x)
def _layernorm(x, axis=-1, eps=1e-5):
    m = x.mean(dim=axis, keepdim=True)
    v = x.var(dim=axis, keepdim=True, unbiased=False)
    return (x - m) / torch.sqrt(v + eps)
def _scatter_add(tgt, idx, src, axis=0):
    return tgt.clone().index_add_(axis, idx, src)
def _segment_sum(src, seg, n):
    out = torch.zeros((n,) + src.shape[1:], dtype=src.dtype)
    return out.index_add_(0, seg, src)
def _pad(x, pw):
    flat = tuple(v for pair in reversed(pw) for v in pair)
    return torch.nn.functional.pad(x, flat)

kernel_name = 'recurrent_scan__mha_block_cached__geglu_ffn__decode'

def setup_inputs():

    _w = (lambda a: (lambda t: t.to(torch.bfloat16) if t.is_floating_point() else t)(torch.as_tensor(a)))
    def _A_setup():
        B, Sq, D = 8, 1, 512
        H, Sk, Dh = 32, 4096, 128
        return {
            "x": _w((lambda *s: torch.randn(*s, dtype=torch.bfloat16) * 0.05)(B, Sq, D)),
            "k_cache": _w((lambda *s: torch.randn(*s, dtype=torch.bfloat16) * 1.6)(B, H, Sk, Dh)),
            "v_cache": _w((lambda *s: torch.randn(*s, dtype=torch.bfloat16) * 0.2)(B, H, Sk, Dh)),
            "wq": _w((lambda *s: torch.randn(*s, dtype=torch.bfloat16) * 1.6)(D, H * Dh) * (D ** -0.5)),
            "wo": _w((lambda *s: torch.randn(*s, dtype=torch.bfloat16) * 0.2)(H * Dh, D) * ((H * Dh) ** -0.5)),
        }
    _A_in = _A_setup()

    def _B_setup():
        B, S, D, F = 8, 1, 512, 1792
        return {
            "x": _w((lambda *s: torch.randn(*s, dtype=torch.bfloat16) * 0.05)(B, S, D)),
            "w_gate": _w((lambda *s: torch.randn(*s, dtype=torch.bfloat16) * 0.1)(D, F)),
            "w_up": _w((lambda *s: torch.randn(*s, dtype=torch.bfloat16) * 0.1)(D, F)),
            "w_down": _w((lambda *s: torch.randn(*s, dtype=torch.bfloat16) * 0.1)(F, D)),
        }
    _B_in = _B_setup()

    return {
        "A_x": _A_in["x"],
        "A_k_cache": _A_in["k_cache"],
        "A_v_cache": _A_in["v_cache"],
        "A_wq": _A_in["wq"],
        "A_wo": _A_in["wo"],
        "B_x": _B_in["x"],
        "B_w_gate": _B_in["w_gate"],
        "B_w_up": _B_in["w_up"],
        "B_w_down": _B_in["w_down"],
    }

def reference(A_x, A_k_cache, A_v_cache, A_wq, A_wo, B_x, B_w_gate, B_w_up, B_w_down):
    def _A_ref(x, k_cache, v_cache, wq, wo):
        B, Sq, D = x.shape
        H, Dh = 32, 128
        q = (lambda x, *d: x.permute(*d))((x @ wq).reshape(B, Sq, H, Dh), 0, 2, 1, 3)
        scores = torch.einsum("bhqd,bhkd->bhqk", q, k_cache) * (Dh ** -0.5)
        p = _softmax(scores, axis=-1)
        o = torch.einsum("bhqk,bhkd->bhqd", p, v_cache)
        return (lambda x, *d: x.permute(*d))(o, 0, 2, 1, 3).reshape(B, Sq, H * Dh) @ wo

    def _B_ref(x, w_gate, w_up, w_down):
        return (_gelu(x @ w_gate) * (x @ w_up)) @ w_down

    x = A_x
    xn = _layernorm(x, axis=-1)
    s = _A_ref(xn, A_k_cache, A_v_cache, A_wq, A_wo)
    g = _silu(_B_ref(xn, B_w_gate, B_w_up, B_w_down))
    return x + s * g
```

```python
import re

TRANS = ("v_exp_f32", "v_log_f32", "v_rcp_f32", "v_rsq_f32", "v_sqrt_f32", "v_sin_f32", "v_cos_f32")

def regs_of(tok):
    tok = tok.strip()
    tok = tok.lstrip("-")
    if tok.startswith("abs(") or tok.startswith("|"):
        tok = tok.replace("abs(", "").replace(")", "").replace("|", "")
    m = re.fullmatch(r"([vsa])(\d+)", tok)
    if m:
        return [(m.group(1), int(m.group(2)))]
    m = re.fullmatch(r"([vsa])\[(\d+):(\d+)\]", tok)
    if m:
        return [(m.group(1), i) for i in range(int(m.group(2)), int(m.group(3)) + 1)]
    if tok == "vcc":
        return [("s", 106), ("s", 107)]
    if tok == "exec":
        return [("x", 0)]
    if tok == "m0":
        return [("m", 0)]
    return []

class Ins:
    def __init__(self, text):
        self.text = text
        t = text.split(";")[0].strip()
        self.label = t.endswith(":")
        self.directive = t.startswith(".")
        parts = t.split(None, 1)
        self.op = parts[0] if parts else ""
        ops = []
        if len(parts) > 1:
            cur = ""; depth = 0
            for ch in parts[1]:
                if ch == "[": depth += 1
                if ch == "]": depth -= 1
                if ch == "," and depth == 0:
                    ops.append(cur.strip()); cur = ""
                else:
                    cur += ch
            ops.append(cur.strip())
        self.mods = ""
        if ops:
            last = ops[-1].split(None, 1)
            ops[-1] = last[0] if last else ""
            self.mods = last[1] if len(last) > 1 else ""
        self.ops = ops
        op = self.op
        self.mfma = op.startswith("v_mfma")
        self.valu = op.startswith("v_") and not self.mfma
        self.trans = any(op.startswith(x) for x in TRANS)
        self.vmem = op.startswith(("buffer_", "global_", "flat_"))
        self.ds = op.startswith("ds_")
        self.salu = op.startswith("s_")
        self.dpp = self.valu and ("_dpp" in op or re.search(r"quad_perm|row_shl|row_shr|row_ror|row_mirror|row_half_mirror|row_bcast|wave_", self.mods) is not None)
        self.perm = op.startswith("v_permlane")
        self.rdlane = op.startswith(("v_readlane", "v_readfirstlane"))
        self.defs, self.uses = [], []
        R = [regs_of(o) for o in ops]
        if self.label or self.directive or not op:
            return
        if self.mfma:
            self.defs = R[0]; self.uses = R[1] + R[2] + R[3]; self.srcc = R[3]; self.ab = R[1] + R[2]
        elif self.valu:
            if op.startswith("v_cmp"):
                self.defs = R[0]; self.uses = sum(R[1:], [])
                if op.startswith("v_cmpx"): self.defs = self.defs + [("x", 0)]
            elif self.perm and "swap" in op:
                self.defs = R[0] + R[1]; self.uses = R[0] + R[1]
            elif op.startswith(("v_add_co", "v_sub_co", "v_addc_co", "v_subb_co", "v_mad_u64")):
                self.defs = R[0] + R[1]; self.uses = sum(R[2:], [])
            else:
                self.defs = R[0]; self.uses = sum(R[1:], [])
                if op.startswith(("v_fmac", "v_dot2c", "v_writelane")) or self.dpp: self.uses = self.uses + R[0]
                if op.startswith("v_cndmask") and len(ops) == 3: self.uses += regs_of("vcc")
        elif self.vmem:
            if "store" in op or ("atomic" in op and "sc0" not in self.mods):
                self.uses = sum(R, [])
                self.store = True
            elif " lds" in (" " + self.mods):
                self.uses = sum(R, []) + [("m", 0)]
            else:
                self.defs = R[0]; self.uses = sum(R[1:], [])
                if "atomic" in op: self.uses += R[0]
        elif self.ds:
            if op.startswith(("ds_write", "ds_add_u32", "ds_add_f32")):
                self.uses = sum(R, [])
            else:
                self.defs = R[0]; self.uses = sum(R[1:], [])
        elif self.salu:
            if op.startswith(("s_cmp", "s_cbranch", "s_branch", "s_waitcnt", "s_nop", "s_barrier", "s_sleep", "s_setprio", "s_endpgm")):
                self.uses = sum(R, [])
            else:
                self.defs = R[0]; self.uses = sum(R[1:], [])
                if "saveexec" in op: self.defs = self.defs + [("x", 0)]

    def states(self):
        if self.label or self.directive or not self.op: return 0
        if self.op == "s_nop": return int(self.ops[0]) + 1
        return 1

def mfma_passes(op):
    if "16x16x32" in op or "16x16x16" in op: return 4
    if "32x32x16" in op or "32x32x8" in op: return 8
    raise ValueError(op)

def need(prod, cons):
    n = 0
    pd = set(prod.defs); cu = set(cons.uses); cd = set(cons.defs)
    vd = {r for r in pd if r[0] in "va"}; sd = {r for r in pd if r[0] == "s"}
    if prod.valu:
        if cons.mfma and vd & cu: n = max(n, 2)
        if cons.dpp and vd & cu: n = max(n, 2)
        if cons.perm and vd & cu: n = max(n, 2)
        if cons.rdlane and vd & cu: n = max(n, 1)
        if prod.trans and cons.valu and not cons.trans and vd & cu: n = max(n, 1)
        if prod.trans and (cons.mfma or cons.vmem or cons.ds) and vd & cu: n = max(n, 2)
        if sd & cu:
            if cons.vmem: n = max(n, 5)
            elif cons.valu or cons.mfma: n = max(n, 4 if cons.rdlane or cons.op.startswith("v_writelane") else 2)
            elif cons.salu: n = max(n, 1)
        if ("x", 0) in pd:
            if cons.dpp: n = max(n, 5)
            elif cons.mfma or cons.perm or cons.rdlane: n = max(n, 4)
    if prod.mfma:
        p = mfma_passes(prod.op)
        big = {4: 8, 8: 12}[p]
        if cons.mfma:
            if pd & set(cons.ab): n = max(n, big)
            if pd & set(cons.srcc):
                same = cons.srcc == prod.defs and mfma_passes(cons.op) == p
                n = max(n, 0 if same else {4: 6, 8: 10}[p])
            elif pd & cd: n = max(n, big)
        elif cons.valu or cons.vmem or cons.ds:
            if pd & (cu | cd): n = max(n, big)
        if cons.valu and set(prod.srcc) & cd: n = max(n, {4: 3, 8: 7}[p])
    if prod.vmem and getattr(prod, "store", False) and ("x4" in prod.op or "x3" in prod.op):
        data = set(regs_of(prod.ops[0])) if prod.op.startswith("buffer") else set(regs_of(prod.ops[1]))
        if data & cd: n = max(n, 2)
    if prod.salu:
        if ("m", 0) in pd and ("m", 0) in cu: n = max(n, 1)
        if ("x", 0) in pd and cons.dpp: n = max(n, 1)
    return n

class Asm:
    def __init__(self):
        self.lines = []
    def __call__(self, text):
        for ln in text.split("\n"):
            ln = ln.strip()
            if ln: self.lines.append(ln)
    def finish(self):
        out = []
        for ln in self.lines:
            if ln.startswith(";") :
                out.append(Ins(ln)); out[-1].op = ""; continue
            ins = Ins(ln)
            if not (ins.label or ins.directive):
                dist = 0; pad = 0
                for prev in reversed(out):
                    if dist >= 20: break
                    if prev.label or prev.directive or not prev.op: continue
                    k = need(prev, ins)
                    if k > dist: pad = max(pad, k - dist)
                    dist += prev.states()
                while pad > 0:
                    k = min(pad, 16)
                    out.append(Ins(f"s_nop {k-1}")); pad -= k
            out.append(ins)
        res = []
        for i in out:
            t = i.text
            res.append(t if (i.label or i.directive or t.startswith(";")) else "    " + t)
        return "\n".join(res) + "\n"
```

```python
import sys
from asmlib import Asm

NAME = "recurrent_scan__mha_block_cached__geglu_ffn__decode_kernel"

HEADER = """; Kernarg layout for this problem (96 bytes, ptrs only, base s[0:1]):
"""

QP, QB, XD, OP, ML, GV, OD, HT, XA, WT = 0, 2048, 3072, 5120, 7168, 7232, 7424, 9472, 9728, 18176
LDS_BYTES = 36864
XA_STRIDE = 1040
HBUF, P2, INBOX, STAMP = 0x0, 0x10000, 0x40000, 0x100000
LOG2E = 0x3fb8aa3b
SCALE = 0x3db504f3

def f2u(x):
    import struct
    return "0x%08x" % struct.unpack("<I", struct.pack("<f", x))[0]

def gen(ring=4, sweeps=2, ws_win=5, wh_win=6, wo_win=3, pol_w="", pol_o="", pol_f="", stamps=False, spin=1 << 20, slp=8, noffn=False, noatom=False, nopoll=False, noinit=False):
    a = Asm()
    e = a
    e(HEADER.strip())
    e(f"; @launch grid=(256,1,1) block=(512,1,1) lds={LDS_BYTES}")
    e('.amdgcn_target "amdgcn-amd-amdhsa--gfx950"')
    e(".text")
    e(f".globl {NAME}")
    e(".p2align 8")
    e(f".type {NAME},@function")
    e(f"{NAME}:")
    e("s_cmp_ge_u32 s2, 256")
    e("s_cbranch_scc1 L_end")
    if stamps: e("s_memrealtime s[60:61]")
    e("s_load_dwordx16 s[16:31], s[0:1], 0")
    e("s_load_dwordx8 s[32:39], s[0:1], 64")
    e("v_lshrrev_b32 v1, 6, v0")
    e("v_and_b32 v0, 63, v0")
    e("v_readfirstlane_b32 s3, v1")
    e("v_and_b32 v4, 15, v0")
    e("v_lshrrev_b32 v5, 4, v0")
    e("s_lshr_b32 s4, s2, 5")
    e("s_and_b32 s5, s2, 31")
    e(f"s_mov_b32 s6, {LOG2E}")
    e("s_mov_b32 s7, 0xffff0000")

    def masks():
        e("v_and_b32 v6, 1, v4")
        e("v_lshlrev_b32 v6, 4, v6")
        e("v_mov_b32 v7, 0xffff")
        e("v_lshlrev_b32 v6, v6, v7")
        e("v_lshrrev_b32 v7, 1, v4")
        for q in range(4):
            e(f"v_cmp_eq_u32 vcc, {q}, v7")
            e(f"v_cndmask_b32 v{32+q}, 0, v6, vcc")

    def stamp(idx):
        if not stamps: return
        e("s_memrealtime s[62:63]")
        e("s_lshl_b32 s64, s2, 3"); e("s_add_u32 s64, s64, s3"); e("s_lshl_b32 s64, s64, 6")
        e(f"s_add_u32 s64, s64, {STAMP + idx*8}")
        e("s_waitcnt lgkmcnt(0)")
        e("s_mov_b64 s[66:67], exec"); e("s_mov_b64 exec, 1")
        e("v_mov_b32 v60, s62"); e("v_mov_b32 v61, s63"); e("v_mov_b32 v62, s64")
        e("global_store_dwordx2 v62, v[60:61], s[38:39]")
        if idx == 1:
            e("v_mov_b32 v60, s60"); e("v_mov_b32 v61, s61")
            e("global_store_dwordx2 v62, v[60:61], s[38:39] offset:-8")
        e("s_mov_b64 exec, s[66:67]")

    def xswap(op, dst, tmp, kind):
        e(f"v_mov_b32 v{tmp}, v{dst}")
        e(f"v_permlane{kind}_swap_b32 v{dst}, v{tmp}")
        e(f"{op} v{dst}, v{dst}, v{tmp}")

    def dpp_add(dst, ctrl):
        e(f"v_add_f32_dpp v{dst}, v{dst}, v{dst} {ctrl} row_mask:0xf bank_mask:0xf")

    def rbf16(dst, src):
        e(f"v_cvt_pk_bf16_f32 v{dst}, v{src}, v{src}")
        e(f"v_and_b32 v{dst}, s7, v{dst}")

    def onehot_step(dupreg, breg, acc, abuf, first=False):
        for q in range(4):
            e(f"v_and_b32 v{abuf+q}, v{dupreg}, v{32+q}")
        c = "0" if first else f"v[{acc}:{acc+3}]"
        e(f"v_mfma_f32_16x16x32_bf16 v[{acc}:{acc+3}], v[{abuf}:{abuf+3}], v[{breg}:{breg+3}], {c}")

    e("s_cmp_ge_u32 s3, 4")
    e("s_cbranch_scc1 L_helper")

    RB = 256 - ring * 32
    def kreg(gs, i): return RB + gs * 32 + i * 4
    def vreg(gs, i): return RB + gs * 32 + 16 + i * 4
    e("v_lshlrev_b32 v2, 8, v4"); e("v_lshl_add_u32 v2, v5, 4, v2")
    e("v_lshlrev_b32 v3, 10, v5"); e("v_lshl_add_u32 v3, v4, 4, v3")
    e("s_lshl_b32 s40, s3, 12")
    e("s_lshl_b32 s41, s2, 20")
    e("s_mov_b32 s10, 0x100000"); e("s_mov_b32 s11, 0x20000")
    e("s_mov_b32 s14, 0x100000"); e("s_mov_b32 s15, 0x20000")
    e("s_waitcnt lgkmcnt(0)")
    e("s_add_u32 s8, s18, s41"); e("s_addc_u32 s9, s19, 0")
    e("s_add_u32 s12, s20, s41"); e("s_addc_u32 s13, s21, 0")
    def kload(gs, win=None, cnt=[0]):
        for i in range(4):
            if win is not None:
                if cnt[0] >= win: e(f"s_waitcnt vmcnt({win-1})")
                cnt[0] += 1
            r = kreg(gs, i)
            e(f"buffer_load_dwordx4 v[{r}:{r+3}], v2, s[8:11], s40 offen offset:{64*i} nt")
    def vload(gs, win=None, cnt=None):
        for i in range(4):
            if win is not None:
                if cnt[0] >= win: e(f"s_waitcnt vmcnt({win-1})")
                cnt[0] += 1
            r = vreg(gs, i)
            e(f"buffer_load_dwordx4 v[{r}:{r+3}], v3, s[12:15], s40 offen offset:{256*i} nt")
    def advance():
        e(f"s_add_u32 s40, s40, {sweeps*16384}")
        if sweeps > 1:
            e("s_cmp_ge_u32 s40, 0x100000")
            e(f"s_cselect_b32 s41, {0x100000-16384}, 0")
            e("s_sub_u32 s40, s40, s41")
    cnt = [0]
    for gs in range(ring):
        kload(gs, ws_win, cnt); vload(gs, ws_win, cnt); advance()
        if gs == 0:
            masks()
            for r in range(64, 68): e(f"v_mov_b32 v{r}, 0")
            e("v_mov_b32 v68, 0xff800000")
            e("v_mov_b32 v69, 0")
            e(f"s_mov_b32 s42, {SCALE}")
            e("v_lshlrev_b32 v6, 3, v0")
            e("s_lshl_b32 s43, s3, 8")
            e(f"s_add_u32 s43, s43, {QB}")
            e("v_lshl_add_u32 v7, v0, 2, s43")
            e("v_lshl_add_u32 v8, v5, 4, s43")
    stamp(1)
    e("s_barrier")
    stamp(2)
    for w in range(4):
        e(f"ds_read_b64 v[{40+2*w}:{41+2*w}], v6 offset:{QP + w*512}")
    e("s_waitcnt lgkmcnt(0)")
    e("v_add_f32 v40, v40, v42"); e("v_add_f32 v41, v41, v43")
    e("v_add_f32 v44, v44, v46"); e("v_add_f32 v45, v45, v47")
    e("v_add_f32 v40, v40, v44"); e("v_add_f32 v41, v41, v45")
    e("v_cvt_pk_bf16_f32 v40, v40, v41")
    e("ds_write_b32 v7, v40")
    e("s_waitcnt lgkmcnt(0)")
    for s in range(4):
        e(f"ds_read_b128 v[{16+4*s}:{19+4*s}], v8 offset:{64*s}")
    e("s_waitcnt lgkmcnt(0)")

    e("v_and_b32 v8, 3, v0")
    e("s_lshl_b32 s43, s4, 10"); e("s_lshl_b32 s45, s5, 5"); e("s_add_u32 s43, s43, s45")
    e("v_lshl_add_u32 v9, v8, 3, s43")
    e("global_load_dwordx2 v[10:11], v9, s[16:17]")
    e("s_lshl_b32 s43, s2, 11"); e(f"s_add_u32 s43, s43, {INBOX}")
    e("v_lshl_add_u32 v12, v0, 4, s43")
    e("v_lshlrev_b32 v13, 4, v8")
    e("v_lshlrev_b32 v6, 5, v4"); e("v_lshl_add_u32 v6, v5, 4, v6")
    e("s_lshl_b32 s43, s3, 9"); e("v_add_u32 v6, s43, v6")
    e("s_lshl_b32 s43, s3, 2"); e("v_mov_b32 v7, s43")

    def group(gs, reload, wk, wv):
        e(f"s_waitcnt vmcnt({wk})")
        for s in range(4):
            r = kreg(gs, s)
            c = "0" if s == 0 else "v[36:39]"
            e(f"v_mfma_f32_16x16x32_bf16 v[36:39], v[{r}:{r+3}], v[{16+4*s}:{19+4*s}], {c}")
        if reload: kload(gs)
        e("v_cvt_pk_bf16_f32 v40, v36, v37"); e("v_cvt_pk_bf16_f32 v41, v38, v39")
        e("v_lshlrev_b32 v44, 16, v40"); e("v_and_b32 v45, s7, v40")
        e("v_lshlrev_b32 v46, 16, v41"); e("v_and_b32 v47, s7, v41")
        for r in range(44, 48): e(f"v_mul_f32 v{r}, s42, v{r}")
        e("v_cvt_pk_bf16_f32 v40, v44, v45"); e("v_cvt_pk_bf16_f32 v41, v46, v47")
        e("v_lshlrev_b32 v44, 16, v40"); e("v_and_b32 v45, s7, v40")
        e("v_lshlrev_b32 v46, 16, v41"); e("v_and_b32 v47, s7, v41")
        e("v_max3_f32 v48, v44, v45, v46")
        e("v_max3_f32 v48, v48, v47, v68")
        xswap("v_max_f32", 48, 49, 32)
        xswap("v_max_f32", 48, 49, 16)
        e("v_sub_f32 v50, v68, v48")
        e("v_mul_f32 v51, s6, v48")
        e("v_mul_f32 v50, s6, v50")
        e("v_mov_b32 v68, v48")
        for r in range(4): e(f"v_fma_f32 v{44+r}, v{44+r}, s6, -v51")
        e("v_exp_f32 v50, v50")
        for r in range(4): e(f"v_exp_f32 v{44+r}, v{44+r}")
        for r in range(64, 68): e(f"v_mul_f32 v{r}, v50, v{r}")
        for r in range(4): e(f"v_cvt_pk_bf16_f32 v{52+r}, v{44+r}, v{44+r}")
        e("v_add_f32 v44, v44, v45"); e("v_add_f32 v46, v46, v47")
        e("v_fma_f32 v69, v69, v50, v44")
        e("v_add_f32 v69, v69, v46")
        for r in range(4):
            for q in range(4): e(f"v_and_b32 v{72+4*r+q}, v{52+r}, v{32+q}")
        e(f"s_waitcnt vmcnt({wv})")
        for r in range(4):
            v = vreg(gs, r)
            e(f"v_mfma_f32_16x16x32_bf16 v[64:67], v[{72+4*r}:{75+4*r}], v[{v}:{v+3}], v[64:67]")
        if reload:
            vload(gs); advance()

    ng = 64
    D = ring * 8
    nfull = (ng - ring) // ring
    rem = (ng - ring) % ring
    e(f"s_mov_b32 s44, {nfull}")
    e("L_loop:")
    for gs in range(ring): group(gs, True, D - 4, D - 4)
    e("s_sub_u32 s44, s44, 1"); e("s_cmp_lg_u32 s44, 0"); e("s_cbranch_scc1 L_loop")
    for gs in range(rem): group(gs, True, D - 4, D - 4)
    for k in range(ring):
        gs = (rem + k) % ring
        left = (ring - k) * 8
        group(gs, False, left - 4, left - 8)
    stamp(3)
    xswap("v_add_f32", 69, 49, 32)
    xswap("v_add_f32", 69, 49, 16)
    e("s_mov_b32 exec_lo, -1"); e("s_mov_b32 exec_hi, 0")
    e(f"ds_write_b128 v6, v[64:67] offset:{OP}")
    e("s_mov_b64 exec, 1")
    e(f"ds_write_b32 v7, v68 offset:{ML}")
    e(f"ds_write_b32 v7, v69 offset:{ML+16}")
    e("s_mov_b64 exec, -1")
    e("s_waitcnt lgkmcnt(0)")
    e("s_barrier")
    e("s_cmp_lg_u32 s3, 0")
    e("s_cbranch_scc1 L_end")
    e(f"ds_read_b128 v[20:23], v13 offset:{GV}")
    e(f"s_mov_b32 s44, {spin}")
    e("L_fpoll:")
    e("global_load_dwordx4 v[40:43], v12, s[38:39] sc1")
    e("global_load_dwordx4 v[44:47], v12, s[38:39] offset:1024 sc1")
    e("s_waitcnt vmcnt(0)")
    e("v_max3_u32 v48, v40, v41, v42"); e("v_max3_u32 v49, v43, v44, v45")
    e("v_max3_u32 v48, v48, v46, v47"); e("v_max_u32 v48, v48, v49")
    e("v_cmp_eq_u32 vcc, -1, v48")
    e("s_sub_u32 s44, s44, 1")
    e("s_cbranch_vccz L_fgo")
    e("s_cmp_lg_u32 s44, 0")
    e("s_cbranch_scc1 L_fpoll")
    e("L_fgo:")
    stamp(4)
    for r in range(4): e(f"v_add_f32 v{40+r}, v{40+r}, v{44+r}")
    for ctrl in ("row_ror:4", "row_ror:8"):
        for r in range(4): dpp_add(40 + r, ctrl)
    for kind in (16, 32):
        for r in range(4): e(f"v_mov_b32 v{44+r}, v{40+r}")
        for r in range(4): e(f"v_permlane{kind}_swap_b32 v{40+r}, v{44+r}")
        for r in range(4): e(f"v_add_f32 v{40+r}, v{40+r}, v{44+r}")
    e("s_waitcnt lgkmcnt(0)")
    e("v_cvt_pk_bf16_f32 v40, v40, v41"); e("v_cvt_pk_bf16_f32 v42, v42, v43")
    e("v_and_b32 v41, s7, v40"); e("v_lshlrev_b32 v40, 16, v40")
    e("v_and_b32 v43, s7, v42"); e("v_lshlrev_b32 v42, 16, v42")
    for r in range(4): e(f"v_mul_f32 v{40+r}, v{40+r}, v{20+r}")
    e("v_cvt_pk_bf16_f32 v40, v40, v41"); e("v_cvt_pk_bf16_f32 v42, v42, v43")
    e("v_and_b32 v41, s7, v40"); e("v_lshlrev_b32 v40, 16, v40")
    e("v_and_b32 v43, s7, v42"); e("v_lshlrev_b32 v42, 16, v42")
    e("v_lshlrev_b32 v44, 16, v10"); e("v_and_b32 v45, s7, v10")
    e("v_lshlrev_b32 v46, 16, v11"); e("v_and_b32 v47, s7, v11")
    for r in range(4): e(f"v_add_f32 v{40+r}, v{40+r}, v{44+r}")
    e("v_cvt_pk_bf16_f32 v40, v40, v41"); e("v_cvt_pk_bf16_f32 v41, v42, v43")
    e("s_mov_b64 exec, 15")
    e("global_store_dwordx2 v9, v[40:41], s[34:35]")
    e("s_mov_b64 exec, -1")
    stamp(5)
    e("s_endpgm")

    e("L_helper:")
    e("s_setprio 2")
    e("s_sub_u32 s45, s3, 4")
    e("s_lshl_b32 s43, s4, 10")
    e("v_lshl_add_u32 v6, v0, 4, s43")
    e("s_lshl_b32 s43, s45, 20"); e("s_lshl_b32 s46, s5, 8"); e("s_add_u32 s43, s43, s46")
    e("v_lshlrev_b32 v2, 18, v5"); e("v_lshl_add_u32 v2, v4, 4, v2"); e("v_add_u32 v2, s43, v2")
    e("s_mov_b32 s10, 0x400000"); e("s_mov_b32 s11, 0x20000")
    e("s_waitcnt lgkmcnt(0)")
    e("s_mov_b32 s8, s22"); e("s_mov_b32 s9, s23")
    e("global_load_dwordx4 v[8:11], v6, s[16:17]")
    pw = (" " + pol_w) if pol_w else ""
    def wqload(t):
        if t == 0:
            e(f"buffer_load_dwordx4 v[128:131], v2, s[8:11], 0 offen{pw}")
        else:
            e(f"s_mov_b32 s40, {t*8192}")
            e(f"buffer_load_dwordx4 v[{128+4*t}:{131+4*t}], v2, s[8:11], s40 offen{pw}")
    for t in range(wh_win): wqload(t)
    masks()
    e(f"s_waitcnt vmcnt({wh_win})")

    def allred64(r, tmp):
        dpp_add(r, "quad_perm:[1,0,3,2]"); dpp_add(r, "quad_perm:[2,3,0,1]")
        dpp_add(r, "row_half_mirror"); dpp_add(r, "row_mirror")
        xswap("v_add_f32", r, tmp, 16); xswap("v_add_f32", r, tmp, 32)
    def allred8(r, tmp):
        dpp_add(r, "quad_perm:[1,0,3,2]"); dpp_add(r, "quad_perm:[2,3,0,1]")
        dpp_add(r, "row_half_mirror")

    def layernorm(src, ndw, f, red):
        n = 2 * ndw
        for i in range(ndw):
            e(f"v_lshlrev_b32 v{f+2*i}, 16, v{src+i}"); e(f"v_and_b32 v{f+2*i+1}, s7, v{src+i}")
        e(f"v_add_f32 v40, v{f}, v{f+1}"); e(f"v_add_f32 v41, v{f+2}, v{f+3}")
        for i in range(4, n, 2):
            e(f"v_add_f32 v40, v40, v{f+i}"); e(f"v_add_f32 v41, v41, v{f+i+1}")
        e("v_add_f32 v40, v40, v41")
        red(40, 47)
        e(f"v_mul_f32 v40, {f2u(1/512)}, v40")
        e("v_mov_b32 v41, 0"); e("v_mov_b32 v42, 0")
        for i in range(0, n, 2):
            e(f"v_sub_f32 v43, v{f+i}, v40"); e(f"v_sub_f32 v44, v{f+i+1}, v40")
            e("v_fmac_f32 v41, v43, v43"); e("v_fmac_f32 v42, v44, v44")
        e("v_add_f32 v41, v41, v42")
        red(41, 47)
        e(f"v_mul_f32 v41, {f2u(1/512)}, v41")
        rbf16(40, 40); rbf16(41, 41)
        e(f"v_add_f32 v41, {f2u(1e-5)}, v41"); rbf16(41, 41)
        e("v_sqrt_f32 v41, v41"); rbf16(41, 41)
        e("v_rcp_f32 v42, v41")
        for i in range(0, n, 2):
            x0, x1 = f + i, f + i + 1
            e(f"v_sub_f32 v{x0}, v{x0}, v40"); e(f"v_sub_f32 v{x1}, v{x1}, v40")
            e(f"v_cvt_pk_bf16_f32 v43, v{x0}, v{x1}")
            e(f"v_lshlrev_b32 v{x0}, 16, v43"); e(f"v_and_b32 v{x1}, s7, v43")
            e(f"v_mul_f32 v43, v{x0}, v42"); e(f"v_mul_f32 v44, v{x1}, v42")
            e(f"v_fma_f32 v{x0}, -v43, v41, v{x0}"); e(f"v_fma_f32 v{x1}, -v44, v41, v{x1}")
            e(f"v_fma_f32 v{x0}, v{x0}, v42, v43"); e(f"v_fma_f32 v{x1}, v{x1}, v42, v44")

    layernorm(8, 4, 16, allred64)
    for i in range(8): e(f"v_cvt_pk_bf16_f32 v{16+i}, v{16+i}, v{16+i}")
    e("v_lshlrev_b32 v6, 5, v0")
    e(f"ds_write_b128 v6, v[16:19] offset:{XD}"); e(f"ds_write_b128 v6, v[20:23] offset:{XD+16}")
    e("s_lshl_b32 s43, s45, 9")
    e("v_lshl_add_u32 v7, v5, 7, s43")
    e("s_waitcnt lgkmcnt(0)")
    for j in range(8): e(f"ds_read_b128 v[{96+4*j}:{99+4*j}], v7 offset:{XD + 16*j}")
    e("s_waitcnt lgkmcnt(0)")
    for t in range(32):
        e(f"s_waitcnt vmcnt({min(wh_win - 1, 31 - t)})")
        if t + wh_win < 32: wqload(t + wh_win)
        onehot_step(96 + t, 128 + 4*t, 64, 72 + 4*(t & 3), first=(t == 0))
    e("v_lshlrev_b32 v6, 5, v4"); e("v_lshl_add_u32 v6, v5, 4, v6"); e("v_add_u32 v6, s43, v6")
    e("s_mov_b32 exec_lo, -1"); e("s_mov_b32 exec_hi, 0")
    e(f"ds_write_b128 v6, v[64:67] offset:{QP}")
    e("s_mov_b64 exec, -1")
    e("s_waitcnt lgkmcnt(0)")
    stamp(1)
    e("s_barrier")
    e("s_cmp_lg_u32 s45, 0" if not noffn else "s_cmp_lg_u32 s45, 9")
    e("s_cbranch_scc1 L_wo")

    pf = (" " + pol_f) if pol_f else ""
    def poll(label, dword, target):
        if nopoll: return
        e(f"s_mov_b32 s44, {spin}")
        e(f"{label}:")
        e(f"global_load_dword v40, v14, s[36:37] offset:{dword*4} sc1" if isinstance(dword, int) else f"global_load_dword v40, {dword}, s[36:37] sc1")
        e("s_waitcnt vmcnt(0)")
        e("v_readfirstlane_b32 s46, v40")
        e(f"s_cmp_ge_u32 s46, {target}")
        e(f"s_cbranch_scc1 {label}_ok")
        e(f"s_sleep {slp}")
        e("s_sub_u32 s44, s44, 1"); e("s_cmp_lg_u32 s44, 0")
        e(f"s_cbranch_scc1 {label}")
        e(f"{label}_ok:")
    e("s_lshl_b32 s43, s2, 11"); e(f"s_add_u32 s43, s43, {INBOX}")
    e("v_lshl_add_u32 v12, v0, 4, s43")
    for r in range(8, 12): e(f"v_mov_b32 v{r}, -1")
    if not noinit:
        e("global_store_dwordx4 v12, v[8:11], s[38:39] sc1")
        e("global_store_dwordx4 v12, v[8:11], s[38:39] offset:1024 sc1")
    e("v_mov_b32 v14, 0"); e("v_mov_b32 v15, 1")
    e("s_mul_i32 s43, s4, 229376"); e("s_lshl_b32 s46, s5, 5"); e("s_add_u32 s43, s43, s46")
    e("v_lshrrev_b32 v6, 1, v0"); e("v_lshlrev_b32 v6, 10, v6"); e("v_and_b32 v7, 1, v0")
    e("v_lshl_add_u32 v6, v7, 4, v6"); e("v_add_u32 v6, s43, v6")
    e("s_mov_b32 s12, s32"); e("s_mov_b32 s13, s33"); e("s_mov_b32 s14, 1835008"); e("s_mov_b32 s15, 0x20000")
    for t in range(7):
        e(f"s_mov_b32 s40, {t*32768}")
        e(f"buffer_load_dwordx4 v[{224+4*t}:{227+4*t}], v6, s[12:15], s40 offen{pf}")
    e("s_lshr_b32 s46, s2, 6"); e("s_lshl_b32 s46, s46, 3"); e("s_and_b32 s47, s2, 7"); e("s_add_u32 s46, s46, s47")
    e("s_cmp_ge_u32 s46, 28")
    e("s_cbranch_scc1 L_noffn1")
    e("s_lshl_b32 s46, s46, 3"); e("s_lshr_b32 s47, s2, 3"); e("s_and_b32 s47, s47, 7"); e("s_add_u32 s47, s46, s47")
    e("v_lshrrev_b32 v6, 3, v0"); e("v_and_b32 v7, 7, v0")
    e("v_lshlrev_b32 v8, 10, v6"); e("v_lshl_add_u32 v8, v7, 4, v8")
    for t in range(8): e(f"global_load_dwordx4 v[{128+4*t}:{131+4*t}], v8, s[16:17] offset:{128*t}")
    e(f"v_mul_u32_u24 v9, {XA_STRIDE}, v6"); e("v_lshl_add_u32 v9, v7, 4, v9")
    e("v_mul_u32_u24 v10, 3584, v0"); e("s_lshl_b32 s43, s47, 4"); e("v_add_u32 v10, s43, v10")
    e("s_mov_b32 s8, s28"); e("s_mov_b32 s9, s29"); e("s_mov_b32 s10, 1835008")
    e("s_mov_b32 s48, s30"); e("s_mov_b32 s49, s31"); e("s_mov_b32 s50, 1835008"); e("s_mov_b32 s51, 0x20000")
    for t in range(8):
        e(f"s_mov_b32 s40, {t*64*3584}")
        e(f"buffer_load_dwordx4 v[{64+8*t}:{67+8*t}], v10, s[8:11], s40 offen{pf}")
        e(f"buffer_load_dwordx4 v[{68+8*t}:{71+8*t}], v10, s[48:51], s40 offen{pf}")
    e("s_waitcnt vmcnt(16)")
    layernorm(128, 32, 160, allred8)
    for t in range(8):
        for i in range(4): e(f"v_cvt_pk_bf16_f32 v{128+4*t+i}, v{160+8*t+2*i}, v{161+8*t+2*i}")
        e(f"ds_write_b128 v9, v[{128+4*t}:{131+4*t}] offset:{XA + 128*t}")
    e("v_lshlrev_b32 v11, 5, v0")
    e("s_waitcnt vmcnt(0)")
    for t in range(8):
        e(f"ds_write_b128 v11, v[{64+8*t}:{67+8*t}] offset:{WT + t*2048}")
        e(f"ds_write_b128 v11, v[{68+8*t}:{71+8*t}] offset:{WT + t*2048 + 16}")
    e("v_and_b32 v6, 7, v4"); e(f"v_mul_u32_u24 v6, {XA_STRIDE}, v6"); e("v_lshl_add_u32 v6, v5, 4, v6")
    e("v_lshlrev_b32 v7, 8, v5"); e("v_lshl_add_u32 v7, v4, 3, v7")
    e("s_waitcnt lgkmcnt(0)")
    for blk in range(4):
        for j in range(4):
            s = blk * 4 + j
            r = 64 + 8 * j
            e(f"ds_read_b128 v[{r}:{r+3}], v6 offset:{XA + 64*s}")
            e(f"ds_read_b64_tr_b16 v[{r+4}:{r+5}], v7 offset:{WT + 1024*s}")
            e(f"ds_read_b64_tr_b16 v[{r+6}:{r+7}], v7 offset:{WT + 1024*s + 128}")
        e("s_waitcnt lgkmcnt(0)")
        for j in range(4):
            r = 64 + 8 * j
            c = "0" if blk == 0 and j == 0 else "v[48:51]"
            e(f"v_mfma_f32_16x16x32_bf16 v[48:51], v[{r}:{r+3}], v[{r+4}:{r+7}], {c}")
        e("s_nop 7")
    e("s_mov_b32 s43, " + f2u(-2 * 0.7978845608028654 * 1.4426950408889634))
    e("s_mov_b32 s46, " + f2u(-2 * 0.7978845608028654 * 1.4426950408889634 * 0.044715))
    e("v_mov_b32 v45, s43")
    e("v_lshlrev_b32 v8, 6, v5"); e("v_lshl_add_u32 v8, v4, 1, v8")
    for rr in range(4):
        x = 48 + rr
        rbf16(x, x)
        e(f"v_mov_b32_dpp v41, v{x} row_ror:8 row_mask:0xf bank_mask:0xf")
        e(f"v_mul_f32 v42, v{x}, v{x}")
        e("v_fma_f32 v42, v42, s46, v45")
        e(f"v_mul_f32 v42, v42, v{x}")
        e("v_exp_f32 v42, v42")
        e("v_add_f32 v42, 1.0, v42")
        e("v_rcp_f32 v42, v42")
        e(f"v_mul_f32 v42, v42, v{x}")
        rbf16(42, 42)
        e("v_mul_f32 v42, v42, v41")
        e(f"v_cvt_pk_bf16_f32 v{x}, v42, v42")
    e("s_mov_b32 exec_lo, 0x00ff00ff"); e("s_mov_b32 exec_hi, 0")
    for rr in range(4): e(f"ds_write_b16 v8, v{48+rr} offset:{HT + 16*rr}")
    e("s_mov_b64 exec, -1")
    e("v_lshlrev_b32 v8, 4, v0"); e("s_lshl_b32 s43, s47, 7"); e("v_add_u32 v9, s43, v8")
    e("s_waitcnt lgkmcnt(0)")
    e("s_mov_b64 exec, 0xff")
    e(f"ds_read_b128 v[40:43], v8 offset:{HT}")
    e("s_waitcnt lgkmcnt(0)")
    e(f"global_store_dwordx4 v9, v[40:43], s[38:39] offset:{HBUF} sc1")
    e("s_mov_b64 exec, -1")
    e("L_noffn1:")
    e("s_waitcnt vmcnt(0)")
    e("s_mov_b64 exec, 1")
    if not noatom: e("global_atomic_add v14, v15, s[36:37]")
    e("s_mov_b64 exec, -1")
    stamp(2)
    e("v_lshlrev_b32 v11, 4, v0")
    for t in range(7): e(f"ds_write_b128 v11, v[{224+4*t}:{227+4*t}] offset:{WT + 1024*t}")
    e("v_lshlrev_b32 v7, 8, v5"); e("v_lshl_add_u32 v7, v4, 3, v7")
    e("s_waitcnt lgkmcnt(0)")
    for s in range(7):
        e(f"ds_read_b64_tr_b16 v[{96+4*s}:{97+4*s}], v7 offset:{WT + 1024*s}")
        e(f"ds_read_b64_tr_b16 v[{98+4*s}:{99+4*s}], v7 offset:{WT + 1024*s + 128}")
    e("s_mul_i32 s43, s4, 3584")
    e("v_and_b32 v6, 7, v4"); e("v_lshlrev_b32 v6, 4, v6"); e("v_lshl_add_u32 v6, v5, 7, v6"); e("v_add_u32 v6, s43, v6")
    poll("L_pollA", 0, 256)
    stamp(3)
    for s in range(7): e(f"global_load_dwordx4 v[{64+4*s}:{67+4*s}], v6, s[38:39] offset:{HBUF + 512*s} sc1")
    e("s_lshl_b32 s43, s5, 12"); e("s_lshl_b32 s46, s4, 6"); e("s_add_u32 s46, s46, s43"); e(f"s_add_u32 s46, s46, {P2}")
    e("v_lshlrev_b32 v8, 11, v5"); e("v_lshl_add_u32 v8, v4, 2, v8"); e("v_add_u32 v8, s46, v8")
    e("s_lshl_b32 s46, s5, 2"); e("s_add_u32 s46, s46, 128"); e("v_mov_b32 v13, s46")
    e("s_waitcnt vmcnt(0) lgkmcnt(0)")
    for s in range(7):
        c = "0" if s == 0 else "v[48:51]"
        e(f"v_mfma_f32_16x16x32_bf16 v[48:51], v[{64+4*s}:{67+4*s}], v[{96+4*s}:{99+4*s}], {c}")
    e("s_mov_b32 exec_lo, -1"); e("s_mov_b32 exec_hi, 0")
    for rr in range(4): e(f"global_store_dword v8, v{48+rr}, s[38:39] offset:{512*rr} sc1")
    e("s_waitcnt vmcnt(0)")
    e("s_mov_b64 exec, 1")
    if not noatom: e("global_atomic_add v13, v15, s[36:37]")
    e("s_mov_b64 exec, -1")
    e("s_lshl_b32 s46, s4, 9"); e("s_add_u32 s46, s46, s43"); e(f"s_add_u32 s46, s46, {P2}")
    e("v_and_b32 v8, 31, v0"); e("v_lshl_add_u32 v8, v8, 4, s46")
    poll("L_pollB", "v13", 8)
    e("global_load_dwordx4 v[48:51], v8, s[38:39] sc1")
    e("s_waitcnt vmcnt(0)")
    for ctrl in ("row_ror:4", "row_ror:8"):
        for r in range(4): dpp_add(48 + r, ctrl)
    for r in range(4): xswap("v_add_f32", 48 + r, 44 + r, 16)
    for r in range(4):
        y = 48 + r
        rbf16(y, y)
        e(f"v_mul_f32 v42, s6, v{y}")
        e("v_exp_f32 v42, -v42")
        e("v_add_f32 v42, 1.0, v42")
        e("v_rcp_f32 v42, v42")
        e(f"v_mul_f32 v{y}, v42, v{y}")
        rbf16(y, y)
    e("v_lshlrev_b32 v8, 4, v0")
    e("s_mov_b64 exec, 15")
    e(f"ds_write_b128 v8, v[48:51] offset:{GV}")
    e("s_mov_b64 exec, -1")
    stamp(4)

    e("L_wo:")
    po = (" " + pol_o) if pol_o else ""
    e("s_mov_b32 s8, s24"); e("s_mov_b32 s9, s25"); e("s_mov_b32 s10, 0x400000"); e("s_mov_b32 s11, 0x20000")
    e("s_lshl_b32 s43, s5, 17"); e("s_lshl_b32 s46, s45, 8"); e("s_add_u32 s43, s43, s46")
    e("v_lshlrev_b32 v2, 15, v5"); e("v_lshl_add_u32 v2, v4, 4, v2"); e("v_add_u32 v2, s43, v2")
    for t in range(32):
        if t >= wo_win: e(f"s_waitcnt vmcnt({wo_win-1})")
        if t % 4 == 0: e(f"s_mov_b32 s40, {t*1024}")
        e(f"buffer_load_dwordx4 v[{128+4*t}:{131+4*t}], v2, s[8:11], s40 offen offset:{(t&3)*1024}{po}")
    e("s_lshl_b32 s43, s4, 16"); e("s_lshl_b32 s46, s45, 14"); e("s_add_u32 s43, s43, s46")
    e("s_lshl_b32 s46, s5, 6"); e("s_add_u32 s43, s43, s46"); e(f"s_add_u32 s43, s43, {INBOX}")
    e("v_lshrrev_b32 v12, 1, v4"); e("v_lshlrev_b32 v12, 11, v12"); e("v_and_b32 v6, 1, v4")
    e("v_lshl_add_u32 v12, v6, 5, v12"); e("v_lshl_add_u32 v12, v5, 4, v12"); e("v_add_u32 v12, s43, v12")
    e("v_lshlrev_b32 v6, 3, v0")
    e("s_lshl_b32 s43, s45, 9")
    e("v_add_u32 v7, s43, v6")
    e("v_lshl_add_u32 v8, v5, 7, s43")
    e("v_mov_b32 v9, 0")
    e("v_mov_b32 v13, 0x7fc00000")
    e("s_waitcnt vmcnt(0) lgkmcnt(0)")
    stamp(5)
    e("s_barrier")
    e(f"ds_read_b128 v[16:19], v9 offset:{ML}")
    e(f"ds_read_b128 v[20:23], v9 offset:{ML+16}")
    for w in range(4): e(f"ds_read_b64 v[{24+2*w}:{25+2*w}], v6 offset:{OP + 512*w}")
    e("s_waitcnt lgkmcnt(4)")
    e("v_max3_f32 v40, v16, v17, v18"); e("v_max_f32 v40, v40, v19")
    for w in range(4): e(f"v_sub_f32 v{16+w}, v{16+w}, v40")
    for w in range(4): e(f"v_mul_f32 v{16+w}, s6, v{16+w}")
    for w in range(4): e(f"v_exp_f32 v{16+w}, v{16+w}")
    e("v_mul_f32 v41, v16, v20"); e("v_fmac_f32 v41, v17, v21"); e("v_fmac_f32 v41, v18, v22"); e("v_fmac_f32 v41, v19, v23")
    e("v_rcp_f32 v41, v41")
    e("s_waitcnt lgkmcnt(0)")
    e("v_mul_f32 v42, v16, v24"); e("v_mul_f32 v43, v16, v25")
    for w in range(1, 4):
        e(f"v_fmac_f32 v42, v{16+w}, v{24+2*w}"); e(f"v_fmac_f32 v43, v{16+w}, v{25+2*w}")
    e("v_mul_f32 v42, v42, v41"); e("v_mul_f32 v43, v43, v41")
    e("v_cvt_pk_bf16_f32 v42, v42, v42"); e("v_cvt_pk_bf16_f32 v43, v43, v43")
    e(f"ds_write_b64 v7, v[42:43] offset:{OD}")
    e("s_waitcnt lgkmcnt(0)")
    for j in range(8): e(f"ds_read_b128 v[{96+4*j}:{99+4*j}], v8 offset:{OD + 16*j}")
    for t in range(32):
        if t % 4 == 0: e(f"s_waitcnt lgkmcnt({7 - t//4})")
        onehot_step(96 + t, 128 + 4*t, 64, 72 + 4*(t & 3), first=(t == 0))
    for r in range(4):
        e(f"v_cmp_eq_u32 vcc, -1, v{64+r}")
        e(f"v_cndmask_b32 v{64+r}, v{64+r}, v13, vcc")
    e("s_mov_b32 exec_lo, -1"); e("s_mov_b32 exec_hi, 0")
    e("global_store_dwordx4 v12, v[64:67], s[38:39] sc1")
    e("s_mov_b64 exec, -1")
    stamp(6)
    e("L_end:")
    e("s_endpgm")
    e('.section .rodata,"a"')
    e(".p2align 6")
    e(f".amdhsa_kernel {NAME}")
    e(".amdhsa_next_free_vgpr 256")
    e(".amdhsa_next_free_sgpr 72")
    e(".amdhsa_accum_offset 256")
    e(".amdhsa_group_segment_fixed_size 0")
    e(".amdhsa_kernarg_size 96")
    e(".amdhsa_user_sgpr_count 2")
    e(".amdhsa_user_sgpr_kernarg_segment_ptr 1")
    e(".amdhsa_system_sgpr_workgroup_id_x 1")
    e(".end_amdhsa_kernel")
    return a.finish()

if __name__ == "__main__":
    cfg = eval("dict(" + (sys.argv[2] if len(sys.argv) > 2 else "") + ")")
    open(sys.argv[1], "w").write(gen(**cfg))
```

```python
import sys, struct
from asmlib import Asm
from gen_kernel import HEADER, NAME

QP, QB, XD, OP, ML, GV, HF, HF2, PG = 0, 2048, 3072, 5120, 7168, 7232, 7296, 7328, 7360
OD, HA, XA, WT = 7424, 9472, 10624, 18944
XA_STRIDE = 1040
HA_STRIDE = 144
HP = WT + 4 * 16384
EPOCH, FLAG, FFLAG, FPART, OUTB, STAMP = 0x0, 0x1000, 0x9000, 0x10000, 0x80000, 0x200000
LOG2E = 0x3fb8aa3b
SCALE = 0x3db504f3
NFFN = 28

def f2u(x):
    return "0x%08x" % struct.unpack("<I", struct.pack("<f", x))[0]

def gen(ring0=5, nlds=3, win=5, winv=None, sweeps=2, kpat="r8", ws_win=5, wh_win=3, wo_win=2, wf_win=2, stamps=False, spin=1 << 20, slp=100,
        noffn=False, fslp=0, nopoll=False, nowo=False, sprio=3, hprio=2, hprio2=0, trig=9, quota=2, nocomp=False, nowq=False, noinit=False, nofp=False, nofr=False, nogu=False, nodn=False, extra=0):
    LDS_BYTES = max(HP + 16384, WT + nlds * 32768)
    assert LDS_BYTES <= 163840
    ds = 2
    a = Asm()
    e = a
    winv = win if winv is None else winv
    e(HEADER.strip())
    e(f"; @launch grid=(256,1,1) block=(512,1,1) lds={LDS_BYTES}")
    e('.amdgcn_target "amdgcn-amd-amdhsa--gfx950"')
    e(".text")
    e(f".globl {NAME}")
    e(".p2align 8")
    e(f".type {NAME},@function")
    e(f"{NAME}:")
    e("s_cmp_ge_u32 s2, 256")
    e("s_cbranch_scc1 L_end")
    if stamps:
        for k in range(72, 86): e(f"s_mov_b32 s{k}, 0")
        e("s_memrealtime s[70:71]")
    e("s_load_dwordx16 s[16:31], s[0:1], 0")
    e("s_load_dwordx8 s[32:39], s[0:1], 64")
    e("v_lshrrev_b32 v1, 6, v0")
    e("v_and_b32 v0, 63, v0")
    e("v_readfirstlane_b32 s3, v1")
    e("v_and_b32 v4, 15, v0")
    e("v_lshrrev_b32 v5, 4, v0")
    e("s_lshr_b32 s4, s2, 5")
    e("s_and_b32 s5, s2, 31")
    e(f"s_mov_b32 s6, {LOG2E}")
    e("s_mov_b32 s7, 0xffff0000")

    def masks():
        e("v_and_b32 v6, 1, v4")
        e("v_lshlrev_b32 v6, 4, v6")
        e("v_mov_b32 v7, 0xffff")
        e("v_lshlrev_b32 v6, v6, v7")
        e("v_lshrrev_b32 v7, 1, v4")
        for q in range(4):
            e(f"v_cmp_eq_u32 vcc, {q}, v7")
            e(f"v_cndmask_b32 v{32+q}, 0, v6, vcc")

    def stamp(idx, wait=False):
        if not stamps: return
        e(f"s_memrealtime s[{70+2*idx}:{71+2*idx}]")
        if wait: e("s_waitcnt lgkmcnt(0)")
    def flush_stamps():
        if not stamps: return
        e("s_lshl_b32 s64, s2, 3"); e("s_add_u32 s64, s64, s3"); e("s_lshl_b32 s64, s64, 7")
        e(f"s_add_u32 s64, s64, {STAMP}")
        e("s_waitcnt lgkmcnt(0)")
        e("s_mov_b64 exec, 1")
        e("v_mov_b32 v62, s64")
        for idx in range(8):
            e(f"v_mov_b32 v60, s{70+2*idx}"); e(f"v_mov_b32 v61, s{71+2*idx}")
            e(f"global_store_dwordx2 v62, v[60:61], s[38:39] offset:{8*idx}")
            e("s_nop 1")

    def xswap(op, dst, tmp, kind, em=None):
        em = em or e
        em(f"v_mov_b32 v{tmp}, v{dst}")
        em(f"v_permlane{kind}_swap_b32 v{dst}, v{tmp}")
        em(f"{op} v{dst}, v{dst}, v{tmp}")

    def dpp_add(dst, ctrl):
        e(f"v_add_f32_dpp v{dst}, v{dst}, v{dst} {ctrl} row_mask:0xf bank_mask:0xf")

    def rbf16(dst, src):
        e(f"v_cvt_pk_bf16_f32 v{dst}, v{src}, v{src}")
        e(f"v_and_b32 v{dst}, s7, v{dst}")

    def onehot_step(dupreg, breg, acc, abuf, first=False):
        for q in range(4):
            e(f"v_and_b32 v{abuf+q}, v{dupreg}, v{32+q}")
        c = "0" if first else f"v[{acc}:{acc+3}]"
        e(f"v_mfma_f32_16x16x32_bf16 v[{acc}:{acc+3}], v[{abuf}:{abuf+3}], v[{breg}:{breg+3}], {c}")

    def lo32():
        e("s_mov_b32 exec_lo, -1"); e("s_mov_b32 exec_hi, 0")
    def n8():
        e("s_mov_b32 exec_lo, 0x00ff00ff"); e("s_mov_b32 exec_hi, 0x00ff00ff")
    def full():
        e("s_mov_b64 exec, -1")

    e("s_cmp_ge_u32 s3, 4")
    e("s_cbranch_scc1 L_helper")

    if sprio: e(f"s_setprio {sprio}")
    RB = 256 - ring0 * 32
    def kreg(gs, i): return RB + gs * 32 + i * 4
    def vreg(gs, i): return RB + gs * 32 + 16 + i * 4
    if kpat == "r16":
        e("v_lshlrev_b32 v2, 8, v4"); e("v_lshl_add_u32 v2, v5, 4, v2")
        koff = [0, 64, 128, 192]
    else:
        e("v_and_b32 v2, 7, v4"); e("v_lshlrev_b32 v2, 8, v2"); e("v_lshl_add_u32 v2, v5, 4, v2")
        e("v_lshrrev_b32 v3, 3, v4"); e("v_lshl_add_u32 v2, v3, 6, v2")
        koff = [0, 128, 2048, 2176]
    e("v_lshlrev_b32 v3, 10, v5"); e("v_lshl_add_u32 v3, v4, 4, v3")
    e("s_lshl_b32 s40, s3, 12")
    e("s_lshl_b32 s41, s2, 20")
    e("s_mov_b32 s10, 0x100000"); e("s_mov_b32 s11, 0x20000")
    e("s_mov_b32 s14, 0x100000"); e("s_mov_b32 s15, 0x20000")
    e("s_waitcnt lgkmcnt(0)")
    e("s_add_u32 s8, s18, s41"); e("s_addc_u32 s9, s19, 0")
    e("s_add_u32 s12, s20, s41"); e("s_addc_u32 s13, s21, 0")
    order = []
    known = [0]
    def wait_for(ids):
        last = max(order.index(i) for i in ids) + 1
        if last > known[0]:
            e(f"s_waitcnt vmcnt({len(order) - last})")
            known[0] = last
    def throttle(w):
        if len(order) - known[0] >= w:
            e(f"s_waitcnt vmcnt({w-1})")
            known[0] = len(order) - (w - 1)
    def load(n, kind, i, slot, w):
        throttle(w)
        va, srd, off = ("v2", "s[8:11]", koff[i]) if kind == "K" else ("v3", "s[12:15]", 256 * i)
        if isinstance(slot, int):
            r = kreg(slot, i) if kind == "K" else vreg(slot, i)
            e(f"buffer_load_dwordx4 v[{r}:{r+3}], {va}, {srd}, s40 offen offset:{off} nt")
        else:
            dst = slot[1] * 8192 + (0 if kind == "K" else 4096) + 1024 * i - off
            e(f"s_add_u32 m0, s46, {dst + 4096}")
            e("s_nop 0")
            e(f"buffer_load_dwordx4 {va}, {srd}, s40 offen offset:{off} nt lds")
        order.append((n, kind, i))
        if kind == "V" and i == 3: advance()
    def advance():
        e(f"s_add_u32 s40, s40, {sweeps*16384}")
        if sweeps > 1:
            e("s_cmp_ge_u32 s40, 0x100000")
            e(f"s_cselect_b32 s41, {0x100000-16384}, 0")
            e("s_sub_u32 s40, s40, s41")
    def setup_rest():
        masks()
        for r in range(64, 68): e(f"v_mov_b32 v{r}, 0")
        e("v_mov_b32 v68, 0xff800000")
        e("v_mov_b32 v69, 0")
        e(f"s_mov_b32 s42, {SCALE}")
        e(f"s_mul_i32 s46, s3, {nlds*8192}"); e(f"s_add_u32 s46, s46, {WT - 4096}")
        e("v_lshl_add_u32 v70, v0, 4, s46")
        e("v_lshlrev_b32 v71, 3, v0")
        e("s_lshl_b32 s43, s3, 8"); e(f"s_add_u32 s43, s43, {QB}")
        e("v_lshl_add_u32 v31, v0, 2, s43")
        e("v_lshl_add_u32 v15, v5, 4, s43")
        if kpat == "r8":
            e("v_and_b32 v9, 1, v4"); e("v_lshl_add_u32 v15, v9, 6, v15")
        e("v_and_b32 v8, 3, v0")
        e("s_lshl_b32 s43, s4, 10"); e("s_lshl_b32 s45, s5, 5"); e("s_add_u32 s43, s43, s45")
        e("v_lshl_add_u32 v9, v8, 3, s43")
        e("s_lshl_b32 s43, s4, 16"); e("s_lshl_b32 s45, s5, 6"); e("s_add_u32 s43, s43, s45"); e(f"s_add_u32 s43, s43, {OUTB}")
        e("v_lshrrev_b32 v12, 2, v0"); e("v_lshlrev_b32 v12, 11, v12"); e("v_lshl_add_u32 v12, v8, 4, v12"); e("v_add_u32 v12, s43, v12")
        e("v_add_u32 v14, 0x8000, v12")
        e("v_lshlrev_b32 v13, 4, v8")
        e("v_lshlrev_b32 v6, 5, v4"); e("v_lshl_add_u32 v6, v5, 4, v6")
        e("s_lshl_b32 s43, s3, 9"); e("v_add_u32 v6, s43, v6")
        e("s_lshl_b32 s43, s3, 2"); e("v_mov_b32 v7, s43")
        e("global_load_dwordx2 v[10:11], v9, s[16:17]")
        order.append(("x", 0, 0))
    B = ring0 + nlds
    for n in range(B):
        slot = n if n < ring0 else ("lds", n - ring0)
        for kind in "KV":
            for i in range(4):
                if len(order) == ws_win: setup_rest()
                load(n, kind, i, slot, ws_win)
    assert 4 <= ws_win < 8
    stamp(1)
    e("s_barrier")
    stamp(2)
    for w in range(4):
        e(f"ds_read_b64 v[{40+2*w}:{41+2*w}], v71 offset:{QP + w*512}")
    e("s_waitcnt lgkmcnt(0)")
    e("v_add_f32 v40, v40, v42"); e("v_add_f32 v41, v41, v43")
    e("v_add_f32 v44, v44, v46"); e("v_add_f32 v45, v45, v47")
    e("v_add_f32 v40, v40, v44"); e("v_add_f32 v41, v41, v45")
    e("v_cvt_pk_bf16_f32 v40, v40, v41")
    e("ds_write_b32 v31, v40")
    e("s_waitcnt lgkmcnt(0)")
    if kpat == "r16":
        for s in range(4): e(f"ds_read_b128 v[{16+4*s}:{19+4*s}], v15 offset:{64*s}")
    else:
        for s in range(2): e(f"ds_read_b128 v[{16+4*s}:{19+4*s}], v15 offset:{128*s}")
    e("s_waitcnt lgkmcnt(0)")

    busy = {(sl, k) for sl in range(ring0) for k in "KV"}
    pend = []
    def try_issue(maxn):
        k = 0
        while pend and k < maxn and (pend[0][3], pend[0][1]) not in busy:
            n, kind, i, slot = pend.pop(0)
            load(n, kind, i, slot, win if kind == "K" else winv)
            if i == 3: busy.add((slot, kind))
            k += 1
        return k

    def group(n, gs, q):
        wait_for([(n, "K", i) for i in range(4)])
        if kpat == "r16":
            for s in range(4):
                r = kreg(gs, s)
                c = "0" if s == 0 else "v[36:39]"
                e(f"v_mfma_f32_16x16x32_bf16 v[36:39], v[{r}:{r+3}], v[{16+4*s}:{19+4*s}], {c}")
        else:
            r = [kreg(gs, s) for s in range(4)]
            e(f"v_mfma_f32_16x16x32_bf16 v[36:39], v[{r[0]}:{r[0]+3}], v[16:19], 0")
            e(f"v_mfma_f32_16x16x32_bf16 v[56:59], v[{r[2]}:{r[2]+3}], v[16:19], 0")
            e(f"v_mfma_f32_16x16x32_bf16 v[36:39], v[{r[1]}:{r[1]+3}], v[20:23], v[36:39]")
            e(f"v_mfma_f32_16x16x32_bf16 v[56:59], v[{r[3]}:{r[3]+3}], v[20:23], v[56:59]")
        busy.discard((gs, "K"))
        C = []; c = C.append
        if kpat == "r8":
            for r in range(4): c(f"v_permlane32_swap_b32 v{36+r}, v{56+r}")
            for r in range(4): c(f"v_mov_b32_dpp v{36+r}, v{36+r} quad_perm:[0,0,2,2] row_mask:0xf bank_mask:0xf")
            for r in range(4): c(f"v_add_f32_dpp v{36+r}, v{56+r}, v{36+r} quad_perm:[1,1,3,3] row_mask:0xf bank_mask:0xf")
        c("v_cvt_pk_bf16_f32 v40, v36, v37"); c("v_cvt_pk_bf16_f32 v41, v38, v39")
        c("v_lshlrev_b32 v44, 16, v40"); c("v_and_b32 v45, s7, v40")
        c("v_lshlrev_b32 v46, 16, v41"); c("v_and_b32 v47, s7, v41")
        for r in range(44, 48): c(f"v_mul_f32 v{r}, s42, v{r}")
        c("v_cvt_pk_bf16_f32 v40, v44, v45"); c("v_cvt_pk_bf16_f32 v41, v46, v47")
        c("v_lshlrev_b32 v44, 16, v40"); c("v_and_b32 v45, s7, v40")
        c("v_lshlrev_b32 v46, 16, v41"); c("v_and_b32 v47, s7, v41")
        c("v_max3_f32 v48, v44, v45, v46")
        c("v_max3_f32 v48, v48, v47, v68")
        xswap("v_max_f32", 48, 49, 32, c)
        xswap("v_max_f32", 48, 49, 16, c)
        c("v_sub_f32 v50, v68, v48")
        c("v_mul_f32 v51, s6, v48")
        c("v_mul_f32 v50, s6, v50")
        c("v_mov_b32 v68, v48")
        for r in range(4): c(f"v_fma_f32 v{44+r}, v{44+r}, s6, -v51")
        c("v_exp_f32 v50, v50")
        for r in range(4): c(f"v_exp_f32 v{44+r}, v{44+r}")
        for r in range(64, 68): c(f"v_mul_f32 v{r}, v50, v{r}")
        for r in range(4): c(f"v_cvt_pk_bf16_f32 v{52+r}, v{44+r}, v{44+r}")
        c("v_add_f32 v44, v44, v45"); c("v_add_f32 v46, v46, v47")
        c("v_fma_f32 v69, v69, v50, v44")
        c("v_add_f32 v69, v69, v46")
        for r in range(4):
            for qq in range(4): c(f"v_and_b32 v{72+4*r+qq}, v{52+r}, v{32+qq}")
        npos = min(q, 4)
        pos = [k * len(C) // npos for k in range(npos)] if npos else []
        for k, ins in enumerate(C):
            if k in pos: q -= try_issue(1)
            if not nocomp: e(ins)
        wait_for([(n, "V", i) for i in range(4)])
        for r in range(4):
            v = vreg(gs, r)
            e(f"v_mfma_f32_16x16x32_bf16 v[64:67], v[{72+4*r}:{75+4*r}], v[{v}:{v+3}], v[64:67]")
        busy.discard((gs, "V"))
        try_issue(q if q >= 4 else 0)

    def queue(n, slot):
        for kind in "KV":
            for i in range(4): pend.append((n, kind, i, slot))
    ng = 64
    queue(B, 0); queue(B + 1, 1)
    if extra: queue(B + 2, 2)
    lo = 2 + extra
    for n in range(ring0):
        group(n, n, 4 if n == 0 else quota)
    for j in range(nlds):
        n = ring0 + j
        slot = lo + (j % (ring0 - lo))
        wait_for([(n, kind, i) for kind in "KV" for i in range(4)])
        for p in range(8):
            r = kreg(slot, p)
            e(f"ds_read_b128 v[{r}:{r+3}], v70 offset:{4096 + j*8192 + p*1024}")
        e("s_waitcnt lgkmcnt(0)")
        if j == nlds - 1: e("s_barrier")
        group(n, slot, quota)
    if nlds == 0: e("s_barrier")
    if extra:
        group(B, 0, 8)
        while pend: assert try_issue(99)
        B = B + 1
        sl = [1, 2]
    else:
        while pend: assert try_issue(99)
        sl = [0, 1]
    nxt = B
    nrel = ng - B - 2
    nfull, rem = nrel // 2, nrel % 2
    def steady(n):
        queue(n + 2, sl[(n - B) & 1]); group(n, sl[(n - B) & 1], 8); assert not pend
    known[0] = min(known[0], len(order) - min(win, winv) + 1)
    stamp(6)
    e(f"s_mov_b32 s44, {nfull}")
    e("L_loop:")
    lines0 = len(a.lines)
    k0 = len(order) - known[0]
    steady(B); steady(B + 1)
    assert len(order) - known[0] == k0, (k0, len(order) - known[0])
    e(f"s_cmp_lg_u32 s44, {trig}"); e("s_cbranch_scc1 L_notrig")
    e("s_mov_b64 exec, 1"); e("v_mov_b32 v40, 0"); e("v_mov_b32 v41, 1"); e(f"ds_write_b32 v40, v41 offset:{PG}"); full()
    stamp(7)
    e("L_notrig:")
    e("s_sub_u32 s44, s44, 1"); e("s_cmp_lg_u32 s44, 0"); e("s_cbranch_scc1 L_loop")
    n = B + 2
    for _ in range(rem): steady(n); n += 1
    group(n, sl[(n - B) & 1], 0); group(n + 1, sl[(n + 1 - B) & 1], 0)
    stamp(3)
    xswap("v_add_f32", 69, 49, 32)
    xswap("v_add_f32", 69, 49, 16)
    lo32()
    e(f"ds_write_b128 v6, v[64:67] offset:{OP}")
    e("s_mov_b64 exec, 1")
    e(f"ds_write_b32 v7, v68 offset:{ML}")
    e(f"ds_write_b32 v7, v69 offset:{ML+16}")
    full()
    e("s_waitcnt lgkmcnt(0)")
    e("s_barrier")
    e("s_cmp_lg_u32 s3, 0")
    e("s_cbranch_scc1 L_fin")
    e(f"ds_read_b128 v[20:23], v13 offset:{GV}")
    e(f"s_mov_b32 s44, {spin}")
    e("L_fpoll:")
    e("global_load_dwordx4 v[40:43], v12, s[38:39] sc1")
    e("global_load_dwordx4 v[44:47], v14, s[38:39] sc1")
    e("s_waitcnt vmcnt(0)")
    e("v_max3_u32 v48, v40, v41, v42"); e("v_max3_u32 v49, v43, v44, v45")
    e("v_max3_u32 v48, v48, v46, v47"); e("v_max_u32 v48, v48, v49")
    e("v_cmpx_eq_u32 vcc, -1, v48")
    e("s_sub_u32 s44, s44, 1")
    e("s_cbranch_execz L_fgo")
    if fslp: e(f"s_sleep {fslp}")
    e("s_cmp_lg_u32 s44, 0")
    e("s_cbranch_scc1 L_fpoll")
    e("L_fgo:")
    full()
    stamp(4)
    for r in range(4): e(f"v_add_f32 v{40+r}, v{40+r}, v{44+r}")
    for ctrl in ("row_ror:4", "row_ror:8"):
        for r in range(4): dpp_add(40 + r, ctrl)
    for kind in (16, 32):
        for r in range(4): e(f"v_mov_b32 v{44+r}, v{40+r}")
        for r in range(4): e(f"v_permlane{kind}_swap_b32 v{40+r}, v{44+r}")
        for r in range(4): e(f"v_add_f32 v{40+r}, v{40+r}, v{44+r}")
    e("s_waitcnt lgkmcnt(0)")
    e("v_cvt_pk_bf16_f32 v40, v40, v41"); e("v_cvt_pk_bf16_f32 v42, v42, v43")
    e("v_and_b32 v41, s7, v40"); e("v_lshlrev_b32 v40, 16, v40")
    e("v_and_b32 v43, s7, v42"); e("v_lshlrev_b32 v42, 16, v42")
    for r in range(4): e(f"v_mul_f32 v{40+r}, v{40+r}, v{20+r}")
    e("v_cvt_pk_bf16_f32 v40, v40, v41"); e("v_cvt_pk_bf16_f32 v42, v42, v43")
    e("v_and_b32 v41, s7, v40"); e("v_lshlrev_b32 v40, 16, v40")
    e("v_and_b32 v43, s7, v42"); e("v_lshlrev_b32 v42, 16, v42")
    e("v_lshlrev_b32 v44, 16, v10"); e("v_and_b32 v45, s7, v10")
    e("v_lshlrev_b32 v46, 16, v11"); e("v_and_b32 v47, s7, v11")
    for r in range(4): e(f"v_add_f32 v{40+r}, v{40+r}, v{44+r}")
    e("v_cvt_pk_bf16_f32 v40, v40, v41"); e("v_cvt_pk_bf16_f32 v41, v42, v43")
    e("s_mov_b64 exec, 15")
    e("global_store_dwordx2 v9, v[40:41], s[34:35]")
    full()
    stamp(5)
    e("s_branch L_fin" if stamps else "s_endpgm")

    e("L_helper:")
    e(f"s_setprio {hprio}")
    e("s_sub_u32 s45, s3, 4")
    e("s_lshl_b32 s43, s4, 10")
    e("v_lshl_add_u32 v6, v0, 4, s43")
    e("s_lshl_b32 s43, s45, 20"); e("s_lshl_b32 s46, s5, 8"); e("s_add_u32 s43, s43, s46")
    e("v_lshlrev_b32 v2, 18, v5"); e("v_lshl_add_u32 v2, v4, 4, v2"); e("v_add_u32 v2, s43, v2")
    e("s_mov_b32 s10, 0x400000"); e("s_mov_b32 s11, 0x20000")
    e("s_waitcnt lgkmcnt(0)")
    e("s_mov_b32 s8, s22"); e("s_mov_b32 s9, s23")
    e("global_load_dwordx4 v[8:11], v6, s[16:17] nt")
    e(f"s_load_dwordx2 s[52:53], s[38:39], {EPOCH}")
    def wqload(t):
        e(f"s_mov_b32 s40, {t*8192}")
        if not nowq: e(f"buffer_load_dwordx4 v[{128+4*t}:{131+4*t}], v2, s[8:11], s40 offen nt")
    for t in range(wh_win): wqload(t)
    masks()
    e("v_mov_b32 v6, 0"); e(f"ds_write_b32 v6, v6 offset:{PG}")
    e("s_lshl_b32 s43, s45, 3"); e("v_mov_b32 v30, s43")
    e("v_and_b32 v31, 3, v0"); e("v_lshlrev_b32 v31, 3, v31")
    e(f"s_waitcnt vmcnt({wh_win}) lgkmcnt(0)")
    e("s_add_u32 s52, s52, 1"); e("s_addc_u32 s53, s53, 0")
    e("v_mov_b32 v24, s52"); e("v_mov_b32 v25, s53")

    def allred64(r, tmp):
        allred32(r, tmp); xswap("v_add_f32", r, tmp, 32)
    def allred32(r, tmp):
        dpp_add(r, "quad_perm:[1,0,3,2]"); dpp_add(r, "quad_perm:[2,3,0,1]")
        dpp_add(r, "row_half_mirror"); dpp_add(r, "row_mirror")
        xswap("v_add_f32", r, tmp, 16)

    def layernorm(src, ndw, f, red, pack=True, between=None):
        n = 2 * ndw
        for i in range(ndw):
            e(f"v_lshlrev_b32 v{f+2*i}, 16, v{src+i}"); e(f"v_and_b32 v{f+2*i+1}, s7, v{src+i}")
        e(f"v_add_f32 v40, v{f}, v{f+1}"); e(f"v_add_f32 v41, v{f+2}, v{f+3}")
        for i in range(4, n, 2):
            e(f"v_add_f32 v40, v40, v{f+i}"); e(f"v_add_f32 v41, v41, v{f+i+1}")
        e("v_add_f32 v40, v40, v41")
        red(40, 47)
        e(f"v_mul_f32 v40, {f2u(1/512)}, v40")
        e(f"v_sub_f32 v43, v{f}, v40"); e(f"v_sub_f32 v44, v{f+1}, v40")
        e("v_mul_f32 v41, v43, v43"); e("v_mul_f32 v42, v44, v44")
        for i in range(2, n, 2):
            e(f"v_sub_f32 v43, v{f+i}, v40"); e(f"v_sub_f32 v44, v{f+i+1}, v40")
            e("v_fmac_f32 v41, v43, v43"); e("v_fmac_f32 v42, v44, v44")
        e("v_add_f32 v41, v41, v42")
        red(41, 47)
        e(f"v_mul_f32 v41, {f2u(1/512)}, v41")
        rbf16(41, 41); rbf16(40, 40)
        e(f"v_add_f32 v41, {f2u(1e-5)}, v41"); rbf16(41, 41)
        e("v_sqrt_f32 v41, v41"); rbf16(41, 41)
        e("v_rcp_f32 v42, v41")
        for i in range(0, n, 2):
            x0, x1 = f + i, f + i + 1
            e(f"v_sub_f32 v{x0}, v{x0}, v40"); e(f"v_sub_f32 v{x1}, v{x1}, v40")
            e(f"v_cvt_pk_bf16_f32 v43, v{x0}, v{x1}")
            e(f"v_lshlrev_b32 v{x0}, 16, v43"); e(f"v_and_b32 v{x1}, s7, v43")
            e(f"v_mul_f32 v43, v{x0}, v42"); e(f"v_mul_f32 v44, v{x1}, v42")
            e(f"v_fma_f32 v{x0}, -v43, v41, v{x0}"); e(f"v_fma_f32 v{x1}, -v44, v41, v{x1}")
            e(f"v_fma_f32 v{x0}, v{x0}, v42, v43"); e(f"v_fma_f32 v{x1}, v{x1}, v42, v44")
            if pack: e(f"v_cvt_pk_bf16_f32 v{src + i//2}, v{x0}, v{x1}")

    def hsync_pub(base):
        e("s_mov_b64 exec, 1")
        e(f"ds_write_b64 v30, v[24:25] offset:{base}")
        full()
    def hsync(label, base):
        e(f"s_mov_b32 s44, {spin}")
        e(f"{label}:")
        e(f"ds_read_b64 v[40:41], v31 offset:{base}")
        e("s_waitcnt lgkmcnt(0)")
        e("v_cmp_ne_u64 vcc, v[40:41], v[24:25]")
        e("s_sub_u32 s44, s44, 1")
        e(f"s_cbranch_vccz {label}_ok")
        e("s_sleep 2")
        e("s_cmp_lg_u32 s44, 0")
        e(f"s_cbranch_scc1 {label}")
        e(f"{label}_ok:")

    layernorm(8, 4, 16, allred64, pack=False)
    for i in range(8): e(f"v_cvt_pk_bf16_f32 v{16+i}, v{16+i}, v{16+i}")
    e("v_lshlrev_b32 v6, 5, v0")
    e(f"ds_write_b128 v6, v[16:19] offset:{XD}"); e(f"ds_write_b128 v6, v[20:23] offset:{XD+16}")
    e("s_lshl_b32 s43, s45, 9")
    e("v_lshl_add_u32 v7, v5, 7, s43")
    e("s_waitcnt lgkmcnt(0)")
    for j in range(8): e(f"ds_read_b128 v[{96+4*j}:{99+4*j}], v7 offset:{XD + 16*j}")
    e("s_waitcnt lgkmcnt(0)")
    for t in range(32):
        e(f"s_waitcnt vmcnt({min(wh_win - 1, 31 - t)})")
        if t + wh_win < 32: wqload(t + wh_win)
        onehot_step(96 + t, 128 + 4*t, 64, 72 + 4*(t & 3), first=(t == 0))
    e("v_lshlrev_b32 v6, 5, v4"); e("v_lshl_add_u32 v6, v5, 4, v6"); e("v_add_u32 v6, s43, v6")
    lo32()
    e(f"ds_write_b128 v6, v[64:67] offset:{QP}")
    full()
    e("s_waitcnt lgkmcnt(0)")
    stamp(1)
    e("s_barrier")
    e(f"s_setprio {hprio2}")
    e(f"s_cmp_lg_u32 s45, {9 if noinit else 3}")
    e("s_cbranch_scc1 L_noinit")
    e("s_lshl_b32 s43, s2, 11"); e(f"s_add_u32 s43, s43, {OUTB}")
    e("v_lshl_add_u32 v12, v0, 4, s43")
    for r in range(8, 12): e(f"v_mov_b32 v{r}, -1")
    e("global_store_dwordx4 v12, v[8:11], s[38:39] sc1")
    e("global_store_dwordx4 v12, v[8:11], s[38:39] offset:1024 sc1")
    e("s_lshl_b32 s43, s2, 7"); e(f"s_add_u32 s43, s43, {FLAG}"); e("v_mov_b32 v12, s43")
    e("s_waitcnt vmcnt(0)")
    e("s_mov_b64 exec, 1")
    e("global_store_dwordx2 v12, v[24:25], s[38:39] sc1")
    full()
    e("L_noinit:")
    e("s_barrier")
    e(f"s_cmp_ge_u32 s2, {0 if noffn else NFFN}")
    e("s_cbranch_scc1 L_wo")

    e("v_lshrrev_b32 v6, 5, v0"); e("v_and_b32 v7, 31, v0")
    e("s_lshl_b32 s43, s45, 11")
    e("v_lshlrev_b32 v8, 10, v6"); e("v_lshl_add_u32 v8, v7, 4, v8"); e("v_add_u32 v8, s43, v8")
    e("global_load_dwordx4 v[96:99], v8, s[16:17] nt")
    e("global_load_dwordx4 v[100:103], v8, s[16:17] offset:512 nt")
    e("s_lshl_b32 s43, s45, 1"); e("v_add_u32 v6, s43, v6"); e(f"v_mul_u32_u24 v11, {XA_STRIDE}, v6"); e("v_lshl_add_u32 v11, v7, 4, v11")
    e("v_lshrrev_b32 v6, 2, v4"); e("v_and_b32 v7, 3, v4")
    e("v_lshlrev_b32 v13, 10, v5"); e("v_lshl_add_u32 v13, v6, 7, v13"); e("v_lshl_add_u32 v13, v7, 3, v13")
    e("v_lshlrev_b32 v15, 11, v5"); e("v_lshl_add_u32 v15, v6, 8, v15"); e("v_lshl_add_u32 v15, v7, 3, v15")
    e("v_and_b32 v6, 7, v4"); e(f"v_mul_u32_u24 v14, {XA_STRIDE}, v6"); e("v_lshl_add_u32 v14, v5, 4, v14")
    e("s_waitcnt vmcnt(0)")
    layernorm(96, 8, 104, allred32)
    e(f"ds_write_b128 v11, v[96:99] offset:{XA}"); e(f"ds_write_b128 v11, v[100:103] offset:{XA + 512}")
    e("s_waitcnt lgkmcnt(0)")
    hsync_pub(HF)
    e("v_lshrrev_b32 v6, 3, v0"); e("v_and_b32 v7, 7, v0")
    e("s_mul_i32 s43, s45, 458752"); e("s_lshl_b32 s46, s2, 7"); e("s_add_u32 s43, s43, s46")
    e("v_mul_u32_u24 v10, 3584, v6"); e("v_lshl_add_u32 v10, v7, 4, v10"); e("v_add_u32 v10, s43, v10")
    e("s_mov_b32 s8, s28"); e("s_mov_b32 s9, s29"); e("s_mov_b32 s10, 1835008")
    e("s_mov_b32 s48, s30"); e("s_mov_b32 s49, s31"); e("s_mov_b32 s50, 1835008"); e("s_mov_b32 s51, 0x20000")
    e("s_mov_b32 s12, s32"); e("s_mov_b32 s13, s33"); e("s_mov_b32 s14, 1835008"); e("s_mov_b32 s15, 0x20000")
    e("s_lshl_b32 s47, s45, 14"); e(f"s_add_u32 s47, s47, {WT}")
    e("v_lshl_add_u32 v11, v0, 4, s47")
    e("v_add_u32 v13, s47, v13"); e("v_add_u32 v15, s47, v15")
    e("s_lshl_b32 s43, s45, 8"); e("v_add_u32 v14, s43, v14")
    for n in range(32):
        s, m, i = n >> 3, (n >> 2) & 1, n & 3
        if n >= wf_win: e(f"s_waitcnt vmcnt({wf_win-1})")
        e(f"s_mov_b32 s40, {(32*s + 8*i) * 3584}")
        if not nogu: e(f"buffer_load_dwordx4 v[{128+4*n}:{131+4*n}], v10, {'s[8:11]' if m == 0 else 's[48:51]'}, s40 offen nt")
    e("s_waitcnt vmcnt(0)")
    hsync("L_hs1", HF)
    for s in range(4):
        for n in range(8): e(f"ds_write_b128 v11, v[{128+32*s+4*n}:{131+32*s+4*n}] offset:{1024*n}")
        e(f"ds_read_b128 v[16:19], v14 offset:{XA + 64*s}")
        e("s_waitcnt lgkmcnt(0)")
        for m in range(2):
            for ct in range(4):
                r = 128 + 32*s + 16*m + 4*ct
                e(f"ds_read_b64_tr_b16 v[{r}:{r+1}], v13 offset:{4096*m + 32*ct}")
                e(f"ds_read_b64_tr_b16 v[{r+2}:{r+3}], v13 offset:{4096*m + 32*ct + 512}")
            e("s_waitcnt lgkmcnt(0)")
            for ct in range(4):
                r = 128 + 32*s + 16*m + 4*ct
                acc = 64 + 16*m + 4*ct
                c = "0" if s == 0 else f"v[{acc}:{acc+3}]"
                e(f"v_mfma_f32_16x16x32_bf16 v[{acc}:{acc+3}], v[{r}:{r+3}], v[16:19], {c}")
    e("s_lshl_b32 s43, s2, 16"); e("s_lshl_b32 s46, s45, 8"); e("s_add_u32 s43, s43, s46")
    e("v_lshlrev_b32 v10, 10, v5"); e("v_lshl_add_u32 v10, v4, 4, v10"); e("v_add_u32 v10, s43, v10")
    e("v_and_b32 v6, 7, v4"); e("v_lshl_add_u32 v6, v5, 3, v6"); e("v_lshlrev_b32 v6, 4, v6"); e(f"v_add_u32 v6, {HP}, v6")
    e("s_lshl_b32 s43, s45, 12"); e("v_add_u32 v7, s43, v6")
    n8()
    for tl in range(8): e(f"ds_write_b128 v7, v[{64+4*tl}:{67+4*tl}] offset:{512*tl}")
    full()
    e("s_waitcnt lgkmcnt(0)")
    hsync_pub(HF2)
    for t in range(16):
        if t >= wf_win: e(f"s_waitcnt vmcnt({wf_win-1})")
        e(f"s_mov_b32 s40, {t*4096}")
        if not nodn: e(f"buffer_load_dwordx4 v[{128+4*t}:{131+4*t}], v10, s[12:15], s40 offen nt")
    hsync("L_hs2", HF2)
    for tl in range(8):
        for w in range(4): e(f"ds_read_b128 v[{192+4*w}:{195+4*w}], v6 offset:{4096*w + 512*tl}")
        e("s_waitcnt lgkmcnt(0)")
        for r in range(4):
            e(f"v_add_f32 v{192+r}, v{192+r}, v{196+r}"); e(f"v_add_f32 v{200+r}, v{200+r}, v{204+r}")
            e(f"v_add_f32 v{64+4*tl+r}, v{192+r}, v{200+r}")
    e("s_mov_b32 s43, " + f2u(-2 * 0.7978845608028654 * 1.4426950408889634))
    e("s_mov_b32 s46, " + f2u(-2 * 0.7978845608028654 * 1.4426950408889634 * 0.044715))
    e("v_mov_b32 v45, s43")
    e("v_and_b32 v8, 7, v4"); e(f"v_mul_u32_u24 v8, {HA_STRIDE}, v8"); e("v_lshl_add_u32 v9, v5, 3, v8"); e("v_lshl_add_u32 v8, v5, 4, v8")
    for ct in range(4):
        for rr in range(4):
            x, u = 64 + 4*ct + rr, 80 + 4*ct + rr
            rbf16(x, x); rbf16(u, u)
            e(f"v_mul_f32 v42, v{x}, v{x}")
            e("v_fma_f32 v42, v42, s46, v45")
            e(f"v_mul_f32 v42, v42, v{x}")
            e("v_exp_f32 v42, v42")
            e("v_add_f32 v42, 1.0, v42")
            e("v_rcp_f32 v42, v42")
            e(f"v_mul_f32 v42, v42, v{x}")
            rbf16(42, 42)
            e(f"v_mul_f32 v{x}, v42, v{u}")
        x = 64 + 4*ct
        e(f"v_cvt_pk_bf16_f32 v{x}, v{x}, v{x+1}"); e(f"v_cvt_pk_bf16_f32 v{x+1}, v{x+2}, v{x+3}")
        e(f"ds_write_b64 v9, v[{x}:{x+1}] offset:{HA + 32*ct}")
    e("s_waitcnt vmcnt(0)")
    for t in range(16): e(f"ds_write_b128 v11, v[{128+4*t}:{131+4*t}] offset:{1024*t}")
    e("s_waitcnt lgkmcnt(0)")
    e(f"ds_read_b128 v[16:19], v8 offset:{HA}"); e(f"ds_read_b128 v[20:23], v8 offset:{HA + 64}")
    for ct in range(8):
        for s in range(2):
            r = 128 + 8*ct + 4*s
            e(f"ds_read_b64_tr_b16 v[{r}:{r+1}], v15 offset:{8192*s + 32*ct}")
            e(f"ds_read_b64_tr_b16 v[{r+2}:{r+3}], v15 offset:{8192*s + 32*ct + 1024}")
        if ct & 1: e("s_waitcnt lgkmcnt(0)")
    for ct in range(8):
        acc = 64 + 4*ct
        e(f"v_mfma_f32_16x16x32_bf16 v[{acc}:{acc+3}], v[{128+8*ct}:{131+8*ct}], v[16:19], 0")
        e(f"v_mfma_f32_16x16x32_bf16 v[{acc}:{acc+3}], v[{132+8*ct}:{135+8*ct}], v[20:23], v[{acc}:{acc+3}]")
    e("s_lshl_b32 s43, s2, 14"); e("s_lshl_b32 s46, s45, 9"); e("s_add_u32 s43, s43, s46"); e(f"s_add_u32 s43, s43, {FPART}")
    e("v_and_b32 v6, 7, v4"); e("v_lshlrev_b32 v6, 11, v6"); e("v_lshl_add_u32 v6, v5, 4, v6"); e("v_add_u32 v6, s43, v6")
    e("s_lshl_b32 s43, s2, 7"); e("s_lshl_b32 s46, s45, 3"); e("s_add_u32 s43, s43, s46"); e(f"s_add_u32 s43, s43, {FFLAG}"); e("v_mov_b32 v8, s43")
    n8()
    for ct in range(8):
        if not nofp: e(f"global_store_dwordx4 v6, v[{64+4*ct}:{67+4*ct}], s[38:39] offset:{64*ct} sc1")
    e("s_waitcnt vmcnt(0)")
    e("s_mov_b64 exec, 1")
    e("global_store_dwordx2 v8, v[24:25], s[38:39] sc1")
    full()
    stamp(2)

    e("L_wo:")
    e("s_mov_b32 s8, s24"); e("s_mov_b32 s9, s25"); e("s_mov_b32 s10, 0x400000"); e("s_mov_b32 s11, 0x20000")
    e("s_lshl_b32 s43, s5, 17"); e("s_lshl_b32 s46, s45, 8"); e("s_add_u32 s43, s43, s46")
    e("v_lshlrev_b32 v2, 15, v5"); e("v_lshl_add_u32 v2, v4, 4, v2"); e("v_add_u32 v2, s43, v2")
    for t in range(32):
        if t >= wo_win: e(f"s_waitcnt vmcnt({wo_win-1})")
        if t % 4 == 0: e(f"s_mov_b32 s40, {t*1024}")
        if not nowo: e(f"buffer_load_dwordx4 v[{128+4*t}:{131+4*t}], v2, s[8:11], s40 offen offset:{(t&3)*1024} nt")
    stamp(3)

    def tagpoll(label, nload):
        if nopoll: return
        e(f"s_mov_b32 s44, {spin}")
        e(f"{label}:")
        for k in range(nload): e(f"global_load_dwordx2 v[{44+2*k}:{45+2*k}], v{40+k}, s[38:39] sc1")
        e("s_waitcnt vmcnt(0)")
        for k in range(nload):
            e(f"v_xor_b32 v{44+2*k}, v{44+2*k}, v24"); e(f"v_xor_b32 v{45+2*k}, v{45+2*k}, v25")
            e(f"v_or_b32 v{44+2*k}, v{44+2*k}, v{45+2*k}")
            if k: e(f"v_or_b32 v44, v44, v{44+2*k}")
        e("v_cmpx_ne_u32 vcc, 0, v44")
        e("s_sub_u32 s44, s44, 1")
        e(f"s_cbranch_execz {label}_ok")
        e(f"s_sleep {slp}")
        e("s_cmp_lg_u32 s44, 0")
        e(f"s_cbranch_scc1 {label}")
        e(f"{label}_ok:")
        full()
    e("s_cmp_ge_u32 s45, 2"); e("s_cbranch_scc1 L_nog")
    e("v_mov_b32 v40, 0")
    e(f"s_mov_b32 s44, {spin}")
    e("L_pg:")
    e(f"ds_read_b32 v41, v40 offset:{PG}")
    e("s_waitcnt lgkmcnt(0)")
    e("v_readfirstlane_b32 s46, v41")
    e("s_cmp_lg_u32 s46, 0"); e("s_cbranch_scc1 L_pg_ok")
    e("s_sleep 32")
    e("s_sub_u32 s44, s44, 1"); e("s_cmp_lg_u32 s44, 0"); e("s_cbranch_scc1 L_pg")
    e("L_pg_ok:")
    e("s_cmp_lg_u32 s45, 1"); e("s_cbranch_scc1 L_noepoch")
    e("s_cmp_lg_u32 s2, 0"); e("s_cbranch_scc1 L_noepoch")
    e("v_lshlrev_b32 v40, 7, v0"); e(f"v_add_u32 v40, {FLAG}, v40")
    for k in range(1, 4): e(f"v_add_u32 v{40+k}, {8192*k}, v40")
    tagpoll("L_pollE", 4)
    e(f"v_mov_b32 v40, {EPOCH}")
    e("s_mov_b64 exec, 1")
    e("global_store_dwordx2 v40, v[24:25], s[38:39] sc1")
    full()
    e("L_noepoch:")
    e("s_cmp_lg_u32 s45, 0"); e("s_cbranch_scc1 L_nog")
    e("s_lshl_b32 s43, s4, 12"); e(f"s_add_u32 s43, s43, {FLAG}")
    e("v_lshl_add_u32 v40, v0, 7, s43")
    e("v_subrev_u32 v41, 32, v0"); e(f"v_min_u32 v41, {NFFN-1}, v41")
    e("s_lshr_b32 s43, s5, 3"); e("s_lshl_b32 s43, s43, 3"); e(f"s_add_u32 s43, s43, {FFLAG}")
    e("v_lshl_add_u32 v41, v41, 7, s43")
    e("v_cmp_gt_u32 vcc, 32, v0")
    if not noffn: e("v_cndmask_b32 v40, v41, v40, vcc")
    else: e("v_and_b32 v41, 31, v0"); e("s_lshl_b32 s43, s4, 12"); e(f"s_add_u32 s43, s43, {FLAG}"); e("v_lshl_add_u32 v40, v41, 7, s43")
    tagpoll("L_pollG", 1)
    e("s_lshl_b32 s43, s4, 11"); e("s_lshl_b32 s46, s5, 6"); e("s_add_u32 s43, s43, s46"); e(f"s_add_u32 s43, s43, {FPART}")
    e("v_lshrrev_b32 v40, 2, v0"); e("v_lshlrev_b32 v40, 14, v40"); e("v_and_b32 v41, 3, v0"); e("v_lshl_add_u32 v40, v41, 4, v40")
    e("v_add_u32 v40, s43, v40"); e(f"v_add_u32 v41, {16*16384}, v40")
    for r in range(52, 56): e(f"v_mov_b32 v{r}, 0")
    if not nofr: e("global_load_dwordx4 v[48:51], v40, s[38:39] sc1")
    e("s_mov_b32 exec_hi, 0xffff")
    if not nofr: e("global_load_dwordx4 v[52:55], v41, s[38:39] sc1")
    full()
    e("s_waitcnt vmcnt(0)")
    for r in range(4): e(f"v_add_f32 v{48+r}, v{48+r}, v{52+r}")
    for ctrl in ("row_ror:4", "row_ror:8"):
        for r in range(4): dpp_add(48 + r, ctrl)
    for r in range(4): xswap("v_add_f32", 48 + r, 44 + r, 16)
    for r in range(4): xswap("v_add_f32", 48 + r, 44 + r, 32)
    for r in range(4):
        y = 48 + r
        rbf16(y, y)
        e(f"v_mul_f32 v42, s6, v{y}")
        e("v_exp_f32 v42, -v42")
        e("v_add_f32 v42, 1.0, v42")
        e("v_rcp_f32 v42, v42")
        e(f"v_mul_f32 v{y}, v42, v{y}")
        rbf16(y, y)
    e("v_lshlrev_b32 v8, 4, v0")
    e("s_mov_b64 exec, 15")
    e(f"ds_write_b128 v8, v[48:51] offset:{GV}")
    full()
    e("L_nog:")
    stamp(4)
    e("s_lshl_b32 s43, s2, 11"); e("s_lshl_b32 s46, s45, 9"); e("s_add_u32 s43, s43, s46"); e(f"s_add_u32 s43, s43, {OUTB}")
    e("v_lshlrev_b32 v12, 5, v4"); e("v_lshl_add_u32 v12, v5, 4, v12"); e("v_add_u32 v12, s43, v12")
    e("v_lshlrev_b32 v6, 3, v0")
    e("s_lshl_b32 s43, s45, 9")
    e("v_add_u32 v7, s43, v6")
    e("v_lshl_add_u32 v8, v5, 7, s43")
    e("v_mov_b32 v9, 0")
    e("v_mov_b32 v13, 0x7fc00000")
    e("s_waitcnt vmcnt(0) lgkmcnt(0)")
    stamp(5, True)
    e("s_setprio 3")
    e("s_barrier")
    e(f"ds_read_b128 v[16:19], v9 offset:{ML}")
    e(f"ds_read_b128 v[20:23], v9 offset:{ML+16}")
    for w in range(4): e(f"ds_read_b64 v[{24+2*w}:{25+2*w}], v6 offset:{OP + 512*w}")
    e("s_waitcnt lgkmcnt(4)")
    e("v_max3_f32 v40, v16, v17, v18"); e("v_max_f32 v40, v40, v19")
    for w in range(4): e(f"v_sub_f32 v{16+w}, v{16+w}, v40")
    for w in range(4): e(f"v_mul_f32 v{16+w}, s6, v{16+w}")
    for w in range(4): e(f"v_exp_f32 v{16+w}, v{16+w}")
    e("v_mul_f32 v41, v16, v20"); e("v_fmac_f32 v41, v17, v21"); e("v_fmac_f32 v41, v18, v22"); e("v_fmac_f32 v41, v19, v23")
    e("v_rcp_f32 v41, v41")
    e("s_waitcnt lgkmcnt(0)")
    e("v_mul_f32 v42, v16, v24"); e("v_mul_f32 v43, v16, v25")
    for w in range(1, 4):
        e(f"v_fmac_f32 v42, v{16+w}, v{24+2*w}"); e(f"v_fmac_f32 v43, v{16+w}, v{25+2*w}")
    e("v_mul_f32 v42, v42, v41"); e("v_mul_f32 v43, v43, v41")
    e("v_cvt_pk_bf16_f32 v42, v42, v42"); e("v_cvt_pk_bf16_f32 v43, v43, v43")
    e(f"ds_write_b64 v7, v[42:43] offset:{OD}")
    e("s_waitcnt lgkmcnt(0)")
    for j in range(8): e(f"ds_read_b128 v[{96+4*j}:{99+4*j}], v8 offset:{OD + 16*j}")
    for t in range(32):
        if t % 4 == 0: e(f"s_waitcnt lgkmcnt({7 - t//4})")
        onehot_step(96 + t, 128 + 4*t, 64, 72 + 4*(t & 3), first=(t == 0))
    for r in range(4):
        e(f"v_cmp_eq_u32 vcc, -1, v{64+r}")
        e(f"v_cndmask_b32 v{64+r}, v{64+r}, v13, vcc")
    lo32()
    e("global_store_dwordx4 v12, v[64:67], s[38:39] sc1")
    full()
    stamp(6)
    e("L_fin:")
    flush_stamps()
    e("L_end:")
    e("s_endpgm")
    e('.section .rodata,"a"')
    e(".p2align 6")
    e(f".amdhsa_kernel {NAME}")
    e(".amdhsa_next_free_vgpr 256")
    e(".amdhsa_next_free_sgpr 90")
    e(".amdhsa_accum_offset 256")
    e(".amdhsa_group_segment_fixed_size 0")
    e(".amdhsa_kernarg_size 96")
    e(".amdhsa_user_sgpr_count 2")
    e(".amdhsa_user_sgpr_kernarg_segment_ptr 1")
    e(".amdhsa_system_sgpr_workgroup_id_x 1")
    e(".end_amdhsa_kernel")
    return a.finish()

if __name__ == "__main__":
    cfg = eval("dict(" + (sys.argv[2] if len(sys.argv) > 2 else "") + ")")
    open(sys.argv[1], "w").write(gen(**cfg))
```

```python
import sys, struct
from asmlib import Asm
from gen_kernel import HEADER, NAME

QP, QB, XD, OP, ML, GV, HF, HF2, PG = 0, 2048, 3072, 5120, 7168, 7232, 7296, 7328, 7360
OD, HA, XA, WT = 7424, 9472, 10624, 18944
XA_STRIDE = 1040
HA_STRIDE = 144
HP = WT + 4 * 16384
EPOCH, FLAG, FFLAG, FPART, OUTB, STAMP = 0x0, 0x1000, 0x9000, 0x10000, 0x80000, 0x200000
LOG2E = 0x3fb8aa3b
SCALE = 0x3db504f3
NFFN = 28

def f2u(x):
    return "0x%08x" % struct.unpack("<I", struct.pack("<f", x))[0]

def gen(ring0=5, nlds=3, win=5, winv=None, sweeps=2, kpat="r8", ws_win=5, wh_win=3, wo_win=2, wf_win=2, stamps=False, spin=1 << 20, slp=100,
        noffn=False, fslp=0, nopoll=False, nowo=False, sprio=3, hprio=2, hprio2=0, trig=9, quota=2, nocomp=False, nowq=False, noinit=False, nofp=False, nofr=False, nogu=False, nodn=False, extra=0, dbg=False):
    LDS_BYTES = max(HP + 16384, WT + nlds * 32768)
    assert LDS_BYTES <= 163840
    ds = 2
    a = Asm()
    e = a
    winv = win if winv is None else winv
    e(HEADER.strip())
    e(f"; @launch grid=(256,1,1) block=(512,1,1) lds={LDS_BYTES}")
    e('.amdgcn_target "amdgcn-amd-amdhsa--gfx950"')
    e(".text")
    e(f".globl {NAME}")
    e(".p2align 8")
    e(f".type {NAME},@function")
    e(f"{NAME}:")
    e("s_cmp_ge_u32 s2, 256")
    e("s_cbranch_scc1 L_end")
    if stamps:
        for k in range(72, 86): e(f"s_mov_b32 s{k}, 0")
        e("s_memrealtime s[70:71]")
    e("s_load_dwordx16 s[16:31], s[0:1], 0")
    e("s_load_dwordx8 s[32:39], s[0:1], 64")
    e("v_lshrrev_b32 v1, 6, v0")
    e("v_and_b32 v0, 63, v0")
    e("v_readfirstlane_b32 s3, v1")
    e("v_and_b32 v4, 15, v0")
    e("v_lshrrev_b32 v5, 4, v0")
    e("s_lshr_b32 s4, s2, 5")
    e("s_and_b32 s5, s2, 31")
    e(f"s_mov_b32 s6, {LOG2E}")
    e("s_mov_b32 s7, 0xffff0000")

    def masks():
        e("v_and_b32 v6, 1, v4")
        e("v_lshlrev_b32 v6, 4, v6")
        e("v_mov_b32 v7, 0xffff")
        e("v_lshlrev_b32 v6, v6, v7")
        e("v_lshrrev_b32 v7, 1, v4")
        for q in range(4):
            e(f"v_cmp_eq_u32 vcc, {q}, v7")
            e(f"v_cndmask_b32 v{32+q}, 0, v6, vcc")

    def stamp(idx, wait=False):
        if not stamps: return
        e(f"s_memrealtime s[{70+2*idx}:{71+2*idx}]")
        if wait: e("s_waitcnt lgkmcnt(0)")
    def flush_stamps():
        if not stamps: return
        e("s_lshl_b32 s64, s2, 3"); e("s_add_u32 s64, s64, s3"); e("s_lshl_b32 s64, s64, 7")
        e(f"s_add_u32 s64, s64, {STAMP}")
        e("s_waitcnt lgkmcnt(0)")
        e("s_mov_b64 exec, 1")
        e("v_mov_b32 v62, s64")
        if dbg:
            e("s_not_b32 s70, s70")
            e("s_cmp_lg_u32 s3, 0"); e("s_cbranch_scc1 L_end"); e("v_mov_b32 v62, 0")
            for idx in (0, 1, 3, 5, 7):
                e(f"v_mov_b32 v60, s{70+2*idx}")
                e(f"global_atomic_umax v62, v60, s[36:37] offset:{4*idx}")
                e("s_nop 1")
            return
        for idx in range(8):
            e(f"v_mov_b32 v60, s{70+2*idx}"); e(f"v_mov_b32 v61, s{71+2*idx}")
            e(f"global_store_dwordx2 v62, v[60:61], s[38:39] offset:{8*idx}")
            e("s_nop 1")

    def xswap(op, dst, tmp, kind, em=None):
        em = em or e
        em(f"v_mov_b32 v{tmp}, v{dst}")
        em(f"v_permlane{kind}_swap_b32 v{dst}, v{tmp}")
        em(f"{op} v{dst}, v{dst}, v{tmp}")

    def dpp_add(dst, ctrl):
        e(f"v_add_f32_dpp v{dst}, v{dst}, v{dst} {ctrl} row_mask:0xf bank_mask:0xf")

    def rbf16(dst, src):
        e(f"v_cvt_pk_bf16_f32 v{dst}, v{src}, v{src}")
        e(f"v_and_b32 v{dst}, s7, v{dst}")

    def onehot_step(dupreg, breg, acc, abuf, first=False):
        for q in range(4):
            e(f"v_and_b32 v{abuf+q}, v{dupreg}, v{32+q}")
        c = "0" if first else f"v[{acc}:{acc+3}]"
        e(f"v_mfma_f32_16x16x32_bf16 v[{acc}:{acc+3}], v[{abuf}:{abuf+3}], v[{breg}:{breg+3}], {c}")

    def lo32():
        e("s_mov_b32 exec_lo, -1"); e("s_mov_b32 exec_hi, 0")
    def n8():
        e("s_mov_b32 exec_lo, 0x00ff00ff"); e("s_mov_b32 exec_hi, 0x00ff00ff")
    def full():
        e("s_mov_b64 exec, -1")

    e("s_cmp_ge_u32 s3, 4")
    e("s_cbranch_scc1 L_helper")

    if sprio: e(f"s_setprio {sprio}")
    RB = 256 - ring0 * 32
    def kreg(gs, i): return RB + gs * 32 + i * 4
    def vreg(gs, i): return RB + gs * 32 + 16 + i * 4
    if kpat == "r16":
        e("v_lshlrev_b32 v2, 8, v4"); e("v_lshl_add_u32 v2, v5, 4, v2")
        koff = [0, 64, 128, 192]
    else:
        e("v_and_b32 v2, 7, v4"); e("v_lshlrev_b32 v2, 8, v2"); e("v_lshl_add_u32 v2, v5, 4, v2")
        e("v_lshrrev_b32 v3, 3, v4"); e("v_lshl_add_u32 v2, v3, 6, v2")
        koff = [0, 128, 2048, 2176]
    e("v_lshlrev_b32 v3, 10, v5"); e("v_lshl_add_u32 v3, v4, 4, v3")
    e("s_lshl_b32 s40, s3, 12")
    e("s_lshl_b32 s41, s2, 20")
    e("s_mov_b32 s10, 0x100000"); e("s_mov_b32 s11, 0x20000")
    e("s_mov_b32 s14, 0x100000"); e("s_mov_b32 s15, 0x20000")
    e("s_waitcnt lgkmcnt(0)")
    e("s_add_u32 s8, s18, s41"); e("s_addc_u32 s9, s19, 0")
    e("s_add_u32 s12, s20, s41"); e("s_addc_u32 s13, s21, 0")
    order = []
    known = [0]
    def wait_for(ids):
        last = max(order.index(i) for i in ids) + 1
        if last > known[0]:
            e(f"s_waitcnt vmcnt({len(order) - last})")
            known[0] = last
    def throttle(w):
        if len(order) - known[0] >= w:
            e(f"s_waitcnt vmcnt({w-1})")
            known[0] = len(order) - (w - 1)
    def load(n, kind, i, slot, w):
        throttle(w)
        va, srd, off = ("v2", "s[8:11]", koff[i]) if kind == "K" else ("v3", "s[12:15]", 256 * i)
        if isinstance(slot, int):
            r = kreg(slot, i) if kind == "K" else vreg(slot, i)
            e(f"buffer_load_dwordx4 v[{r}:{r+3}], {va}, {srd}, s40 offen offset:{off} nt")
        else:
            dst = slot[1] * 8192 + (0 if kind == "K" else 4096) + 1024 * i - off
            e(f"s_add_u32 m0, s46, {dst + 4096}")
            e("s_nop 0")
            e(f"buffer_load_dwordx4 {va}, {srd}, s40 offen offset:{off} nt lds")
        order.append((n, kind, i))
        if kind == "V" and i == 3: advance()
    def advance():
        e(f"s_add_u32 s40, s40, {sweeps*16384}")
        if sweeps > 1:
            e("s_cmp_ge_u32 s40, 0x100000")
            e(f"s_cselect_b32 s41, {0x100000-16384}, 0")
            e("s_sub_u32 s40, s40, s41")
    def setup_rest():
        masks()
        for r in range(64, 68): e(f"v_mov_b32 v{r}, 0")
        e("v_mov_b32 v68, 0xff800000")
        e("v_mov_b32 v69, 0")
        e(f"s_mov_b32 s42, {SCALE}")
        e(f"s_mul_i32 s46, s3, {nlds*8192}"); e(f"s_add_u32 s46, s46, {WT - 4096}")
        e("v_lshl_add_u32 v70, v0, 4, s46")
        e("v_lshlrev_b32 v71, 3, v0")
        e("s_lshl_b32 s43, s3, 8"); e(f"s_add_u32 s43, s43, {QB}")
        e("v_lshl_add_u32 v31, v0, 2, s43")
        e("v_lshl_add_u32 v15, v5, 4, s43")
        if kpat == "r8":
            e("v_and_b32 v9, 1, v4"); e("v_lshl_add_u32 v15, v9, 6, v15")
        e("v_and_b32 v8, 3, v0")
        e("s_lshl_b32 s43, s4, 10"); e("s_lshl_b32 s45, s5, 5"); e("s_add_u32 s43, s43, s45")
        e("v_lshl_add_u32 v9, v8, 3, s43")
        e("s_lshl_b32 s43, s4, 16"); e("s_lshl_b32 s45, s5, 6"); e("s_add_u32 s43, s43, s45"); e(f"s_add_u32 s43, s43, {OUTB}")
        e("v_lshrrev_b32 v12, 2, v0"); e("v_lshlrev_b32 v12, 11, v12"); e("v_lshl_add_u32 v12, v8, 4, v12"); e("v_add_u32 v12, s43, v12")
        e("v_add_u32 v14, 0x8000, v12")
        e("v_lshlrev_b32 v13, 4, v8")
        e("v_lshlrev_b32 v6, 5, v4"); e("v_lshl_add_u32 v6, v5, 4, v6")
        e("s_lshl_b32 s43, s3, 9"); e("v_add_u32 v6, s43, v6")
        e("s_lshl_b32 s43, s3, 2"); e("v_mov_b32 v7, s43")
        e("global_load_dwordx2 v[10:11], v9, s[16:17]")
        order.append(("x", 0, 0))
    B = ring0 + nlds
    for n in range(B):
        slot = n if n < ring0 else ("lds", n - ring0)
        for kind in "KV":
            for i in range(4):
                if len(order) == ws_win: setup_rest()
                load(n, kind, i, slot, ws_win)
    assert 4 <= ws_win < 8
    stamp(1)
    e("s_barrier")
    stamp(2)
    for w in range(4):
        e(f"ds_read_b64 v[{40+2*w}:{41+2*w}], v71 offset:{QP + w*512}")
    e("s_waitcnt lgkmcnt(0)")
    e("v_add_f32 v40, v40, v42"); e("v_add_f32 v41, v41, v43")
    e("v_add_f32 v44, v44, v46"); e("v_add_f32 v45, v45, v47")
    e("v_add_f32 v40, v40, v44"); e("v_add_f32 v41, v41, v45")
    e("v_cvt_pk_bf16_f32 v40, v40, v41")
    e("ds_write_b32 v31, v40")
    e("s_waitcnt lgkmcnt(0)")
    if kpat == "r16":
        for s in range(4): e(f"ds_read_b128 v[{16+4*s}:{19+4*s}], v15 offset:{64*s}")
    else:
        for s in range(2): e(f"ds_read_b128 v[{16+4*s}:{19+4*s}], v15 offset:{128*s}")
    e("s_waitcnt lgkmcnt(0)")

    busy = {(sl, k) for sl in range(ring0) for k in "KV"}
    pend = []
    def try_issue(maxn):
        k = 0
        while pend and k < maxn and (pend[0][3], pend[0][1]) not in busy:
            n, kind, i, slot = pend.pop(0)
            load(n, kind, i, slot, win if kind == "K" else winv)
            if i == 3: busy.add((slot, kind))
            k += 1
        return k

    def group(n, gs, q):
        wait_for([(n, "K", i) for i in range(4)])
        if kpat == "r16":
            for s in range(4):
                r = kreg(gs, s)
                c = "0" if s == 0 else "v[36:39]"
                e(f"v_mfma_f32_16x16x32_bf16 v[36:39], v[{r}:{r+3}], v[{16+4*s}:{19+4*s}], {c}")
        else:
            r = [kreg(gs, s) for s in range(4)]
            e(f"v_mfma_f32_16x16x32_bf16 v[36:39], v[{r[0]}:{r[0]+3}], v[16:19], 0")
            e(f"v_mfma_f32_16x16x32_bf16 v[56:59], v[{r[2]}:{r[2]+3}], v[16:19], 0")
            e(f"v_mfma_f32_16x16x32_bf16 v[36:39], v[{r[1]}:{r[1]+3}], v[20:23], v[36:39]")
            e(f"v_mfma_f32_16x16x32_bf16 v[56:59], v[{r[3]}:{r[3]+3}], v[20:23], v[56:59]")
        busy.discard((gs, "K"))
        C = []; c = C.append
        if kpat == "r8":
            for r in range(4): c(f"v_permlane32_swap_b32 v{36+r}, v{56+r}")
            for r in range(4): c(f"v_mov_b32_dpp v{36+r}, v{36+r} quad_perm:[0,0,2,2] row_mask:0xf bank_mask:0xf")
            for r in range(4): c(f"v_add_f32_dpp v{36+r}, v{56+r}, v{36+r} quad_perm:[1,1,3,3] row_mask:0xf bank_mask:0xf")
        c("v_cvt_pk_bf16_f32 v40, v36, v37"); c("v_cvt_pk_bf16_f32 v41, v38, v39")
        c("v_lshlrev_b32 v44, 16, v40"); c("v_and_b32 v45, s7, v40")
        c("v_lshlrev_b32 v46, 16, v41"); c("v_and_b32 v47, s7, v41")
        for r in range(44, 48): c(f"v_mul_f32 v{r}, s42, v{r}")
        c("v_cvt_pk_bf16_f32 v40, v44, v45"); c("v_cvt_pk_bf16_f32 v41, v46, v47")
        c("v_lshlrev_b32 v44, 16, v40"); c("v_and_b32 v45, s7, v40")
        c("v_lshlrev_b32 v46, 16, v41"); c("v_and_b32 v47, s7, v41")
        c("v_max3_f32 v48, v44, v45, v46")
        c("v_max3_f32 v48, v48, v47, v68")
        xswap("v_max_f32", 48, 49, 32, c)
        xswap("v_max_f32", 48, 49, 16, c)
        c("v_sub_f32 v50, v68, v48")
        c("v_mul_f32 v51, s6, v48")
        c("v_mul_f32 v50, s6, v50")
        c("v_mov_b32 v68, v48")
        for r in range(4): c(f"v_fma_f32 v{44+r}, v{44+r}, s6, -v51")
        c("v_exp_f32 v50, v50")
        for r in range(4): c(f"v_exp_f32 v{44+r}, v{44+r}")
        for r in range(64, 68): c(f"v_mul_f32 v{r}, v50, v{r}")
        for r in range(4): c(f"v_cvt_pk_bf16_f32 v{52+r}, v{44+r}, v{44+r}")
        c("v_add_f32 v44, v44, v45"); c("v_add_f32 v46, v46, v47")
        c("v_fma_f32 v69, v69, v50, v44")
        c("v_add_f32 v69, v69, v46")
        for r in range(4):
            for qq in range(4): c(f"v_and_b32 v{72+4*r+qq}, v{52+r}, v{32+qq}")
        npos = min(q, 4)
        pos = [k * len(C) // npos for k in range(npos)] if npos else []
        for k, ins in enumerate(C):
            if k in pos: q -= try_issue(1)
            if not nocomp: e(ins)
        wait_for([(n, "V", i) for i in range(4)])
        for r in range(4):
            v = vreg(gs, r)
            e(f"v_mfma_f32_16x16x32_bf16 v[64:67], v[{72+4*r}:{75+4*r}], v[{v}:{v+3}], v[64:67]")
        busy.discard((gs, "V"))
        try_issue(q if q >= 4 else 0)

    def queue(n, slot):
        for kind in "KV":
            for i in range(4): pend.append((n, kind, i, slot))
    ng = 64
    queue(B, 0); queue(B + 1, 1)
    if extra: queue(B + 2, 2)
    lo = 2 + extra
    for n in range(ring0):
        group(n, n, 4 if n == 0 else quota)
    for j in range(nlds):
        n = ring0 + j
        slot = lo + (j % (ring0 - lo))
        wait_for([(n, kind, i) for kind in "KV" for i in range(4)])
        for p in range(8):
            r = kreg(slot, p)
            e(f"ds_read_b128 v[{r}:{r+3}], v70 offset:{4096 + j*8192 + p*1024}")
        e("s_waitcnt lgkmcnt(0)")
        if j == nlds - 1: e("s_barrier")
        group(n, slot, quota)
    if nlds == 0: e("s_barrier")
    if extra:
        group(B, 0, 8)
        while pend: assert try_issue(99)
        B = B + 1
        sl = [1, 2]
    else:
        while pend: assert try_issue(99)
        sl = [0, 1]
    nxt = B
    nrel = ng - B - 2
    nfull, rem = nrel // 2, nrel % 2
    def steady(n):
        queue(n + 2, sl[(n - B) & 1]); group(n, sl[(n - B) & 1], 8); assert not pend
    known[0] = min(known[0], len(order) - min(win, winv) + 1)
    stamp(6)
    e(f"s_mov_b32 s44, {nfull}")
    e("L_loop:")
    lines0 = len(a.lines)
    k0 = len(order) - known[0]
    steady(B); steady(B + 1)
    assert len(order) - known[0] == k0, (k0, len(order) - known[0])
    e(f"s_cmp_lg_u32 s44, {trig}"); e("s_cbranch_scc1 L_notrig")
    e("s_mov_b64 exec, 1"); e("v_mov_b32 v40, 0"); e("v_mov_b32 v41, 1"); e(f"ds_write_b32 v40, v41 offset:{PG}"); full()
    stamp(7)
    e("L_notrig:")
    e("s_sub_u32 s44, s44, 1"); e("s_cmp_lg_u32 s44, 0"); e("s_cbranch_scc1 L_loop")
    n = B + 2
    for _ in range(rem): steady(n); n += 1
    group(n, sl[(n - B) & 1], 0); group(n + 1, sl[(n + 1 - B) & 1], 0)
    stamp(3)
    xswap("v_add_f32", 69, 49, 32)
    xswap("v_add_f32", 69, 49, 16)
    lo32()
    e(f"ds_write_b128 v6, v[64:67] offset:{OP}")
    e("s_mov_b64 exec, 1")
    e(f"ds_write_b32 v7, v68 offset:{ML}")
    e(f"ds_write_b32 v7, v69 offset:{ML+16}")
    full()
    e("s_waitcnt lgkmcnt(0)")
    e("s_barrier")
    e("s_cmp_lg_u32 s3, 0")
    e("s_cbranch_scc1 L_fin")
    e(f"ds_read_b128 v[20:23], v13 offset:{GV}")
    e(f"s_mov_b32 s44, {spin}")
    e("L_fpoll:")
    e("global_load_dwordx4 v[40:43], v12, s[38:39] sc1")
    e("global_load_dwordx4 v[44:47], v14, s[38:39] sc1")
    e("s_waitcnt vmcnt(0)")
    e("v_max3_u32 v48, v40, v41, v42"); e("v_max3_u32 v49, v43, v44, v45")
    e("v_max3_u32 v48, v48, v46, v47"); e("v_max_u32 v48, v48, v49")
    e("v_cmpx_eq_u32 vcc, -1, v48")
    e("s_sub_u32 s44, s44, 1")
    e("s_cbranch_execz L_fgo")
    if fslp: e(f"s_sleep {fslp}")
    e("s_cmp_lg_u32 s44, 0")
    e("s_cbranch_scc1 L_fpoll")
    e("L_fgo:")
    full()
    stamp(4)
    for r in range(4): e(f"v_add_f32 v{40+r}, v{40+r}, v{44+r}")
    for ctrl in ("row_ror:4", "row_ror:8"):
        for r in range(4): dpp_add(40 + r, ctrl)
    for kind in (16, 32):
        for r in range(4): e(f"v_mov_b32 v{44+r}, v{40+r}")
        for r in range(4): e(f"v_permlane{kind}_swap_b32 v{40+r}, v{44+r}")
        for r in range(4): e(f"v_add_f32 v{40+r}, v{40+r}, v{44+r}")
    e("s_waitcnt lgkmcnt(0)")
    e("v_cvt_pk_bf16_f32 v40, v40, v41"); e("v_cvt_pk_bf16_f32 v42, v42, v43")
    e("v_and_b32 v41, s7, v40"); e("v_lshlrev_b32 v40, 16, v40")
    e("v_and_b32 v43, s7, v42"); e("v_lshlrev_b32 v42, 16, v42")
    for r in range(4): e(f"v_mul_f32 v{40+r}, v{40+r}, v{20+r}")
    e("v_cvt_pk_bf16_f32 v40, v40, v41"); e("v_cvt_pk_bf16_f32 v42, v42, v43")
    e("v_and_b32 v41, s7, v40"); e("v_lshlrev_b32 v40, 16, v40")
    e("v_and_b32 v43, s7, v42"); e("v_lshlrev_b32 v42, 16, v42")
    e("v_lshlrev_b32 v44, 16, v10"); e("v_and_b32 v45, s7, v10")
    e("v_lshlrev_b32 v46, 16, v11"); e("v_and_b32 v47, s7, v11")
    for r in range(4): e(f"v_add_f32 v{40+r}, v{40+r}, v{44+r}")
    e("v_cvt_pk_bf16_f32 v40, v40, v41"); e("v_cvt_pk_bf16_f32 v41, v42, v43")
    e("s_mov_b64 exec, 15")
    e("global_store_dwordx2 v9, v[40:41], s[34:35]")
    full()
    stamp(5)
    e("s_branch L_fin" if stamps else "s_endpgm")

    e("L_helper:")
    e(f"s_setprio {hprio}")
    e("s_sub_u32 s45, s3, 4")
    e("s_lshl_b32 s43, s4, 10")
    e("v_lshl_add_u32 v6, v0, 4, s43")
    e("s_lshl_b32 s43, s45, 20"); e("s_lshl_b32 s46, s5, 8"); e("s_add_u32 s43, s43, s46")
    e("v_lshlrev_b32 v2, 18, v5"); e("v_lshl_add_u32 v2, v4, 4, v2"); e("v_add_u32 v2, s43, v2")
    e("s_mov_b32 s10, 0x400000"); e("s_mov_b32 s11, 0x20000")
    e("s_waitcnt lgkmcnt(0)")
    e("s_mov_b32 s8, s22"); e("s_mov_b32 s9, s23")
    e("global_load_dwordx4 v[8:11], v6, s[16:17] nt")
    e(f"s_load_dwordx2 s[52:53], s[38:39], {EPOCH}")
    def wqload(t):
        e(f"s_mov_b32 s40, {t*8192}")
        if not nowq: e(f"buffer_load_dwordx4 v[{128+4*t}:{131+4*t}], v2, s[8:11], s40 offen nt")
    for t in range(wh_win): wqload(t)
    masks()
    e("v_mov_b32 v6, 0"); e(f"ds_write_b32 v6, v6 offset:{PG}")
    e("s_lshl_b32 s43, s45, 3"); e("v_mov_b32 v30, s43")
    e("v_and_b32 v31, 3, v0"); e("v_lshlrev_b32 v31, 3, v31")
    e(f"s_waitcnt vmcnt({wh_win}) lgkmcnt(0)")
    e("s_add_u32 s52, s52, 1"); e("s_addc_u32 s53, s53, 0")
    e("v_mov_b32 v24, s52"); e("v_mov_b32 v25, s53")

    def allred64(r, tmp):
        allred32(r, tmp); xswap("v_add_f32", r, tmp, 32)
    def allred32(r, tmp):
        dpp_add(r, "quad_perm:[1,0,3,2]"); dpp_add(r, "quad_perm:[2,3,0,1]")
        dpp_add(r, "row_half_mirror"); dpp_add(r, "row_mirror")
        xswap("v_add_f32", r, tmp, 16)

    def layernorm(src, ndw, f, red, pack=True, between=None):
        n = 2 * ndw
        for i in range(ndw):
            e(f"v_lshlrev_b32 v{f+2*i}, 16, v{src+i}"); e(f"v_and_b32 v{f+2*i+1}, s7, v{src+i}")
        e(f"v_add_f32 v40, v{f}, v{f+1}"); e(f"v_add_f32 v41, v{f+2}, v{f+3}")
        for i in range(4, n, 2):
            e(f"v_add_f32 v40, v40, v{f+i}"); e(f"v_add_f32 v41, v41, v{f+i+1}")
        e("v_add_f32 v40, v40, v41")
        red(40, 47)
        e(f"v_mul_f32 v40, {f2u(1/512)}, v40")
        e(f"v_sub_f32 v43, v{f}, v40"); e(f"v_sub_f32 v44, v{f+1}, v40")
        e("v_mul_f32 v41, v43, v43"); e("v_mul_f32 v42, v44, v44")
        for i in range(2, n, 2):
            e(f"v_sub_f32 v43, v{f+i}, v40"); e(f"v_sub_f32 v44, v{f+i+1}, v40")
            e("v_fmac_f32 v41, v43, v43"); e("v_fmac_f32 v42, v44, v44")
        e("v_add_f32 v41, v41, v42")
        red(41, 47)
        e(f"v_mul_f32 v41, {f2u(1/512)}, v41")
        rbf16(41, 41); rbf16(40, 40)
        e(f"v_add_f32 v41, {f2u(1e-5)}, v41"); rbf16(41, 41)
        e("v_sqrt_f32 v41, v41"); rbf16(41, 41)
        e("v_rcp_f32 v42, v41")
        for i in range(0, n, 2):
            x0, x1 = f + i, f + i + 1
            e(f"v_sub_f32 v{x0}, v{x0}, v40"); e(f"v_sub_f32 v{x1}, v{x1}, v40")
            e(f"v_cvt_pk_bf16_f32 v43, v{x0}, v{x1}")
            e(f"v_lshlrev_b32 v{x0}, 16, v43"); e(f"v_and_b32 v{x1}, s7, v43")
            e(f"v_mul_f32 v43, v{x0}, v42"); e(f"v_mul_f32 v44, v{x1}, v42")
            e(f"v_fma_f32 v{x0}, -v43, v41, v{x0}"); e(f"v_fma_f32 v{x1}, -v44, v41, v{x1}")
            e(f"v_fma_f32 v{x0}, v{x0}, v42, v43"); e(f"v_fma_f32 v{x1}, v{x1}, v42, v44")
            if pack: e(f"v_cvt_pk_bf16_f32 v{src + i//2}, v{x0}, v{x1}")

    def hsync_pub(base):
        e("s_mov_b64 exec, 1")
        e(f"ds_write_b64 v30, v[24:25] offset:{base}")
        full()
    def hsync(label, base):
        e(f"s_mov_b32 s44, {spin}")
        e(f"{label}:")
        e(f"ds_read_b64 v[40:41], v31 offset:{base}")
        e("s_waitcnt lgkmcnt(0)")
        e("v_cmp_ne_u64 vcc, v[40:41], v[24:25]")
        e("s_sub_u32 s44, s44, 1")
        e(f"s_cbranch_vccz {label}_ok")
        e("s_sleep 2")
        e("s_cmp_lg_u32 s44, 0")
        e(f"s_cbranch_scc1 {label}")
        e(f"{label}_ok:")

    layernorm(8, 4, 16, allred64, pack=False)
    for i in range(8): e(f"v_cvt_pk_bf16_f32 v{16+i}, v{16+i}, v{16+i}")
    e("v_lshlrev_b32 v6, 5, v0")
    e(f"ds_write_b128 v6, v[16:19] offset:{XD}"); e(f"ds_write_b128 v6, v[20:23] offset:{XD+16}")
    e("s_lshl_b32 s43, s45, 9")
    e("v_lshl_add_u32 v7, v5, 7, s43")
    e("s_waitcnt lgkmcnt(0)")
    for j in range(8): e(f"ds_read_b128 v[{96+4*j}:{99+4*j}], v7 offset:{XD + 16*j}")
    e("s_waitcnt lgkmcnt(0)")
    for t in range(32):
        e(f"s_waitcnt vmcnt({min(wh_win - 1, 31 - t)})")
        if t + wh_win < 32: wqload(t + wh_win)
        onehot_step(96 + t, 128 + 4*t, 64, 72 + 4*(t & 3), first=(t == 0))
    e("v_lshlrev_b32 v6, 5, v4"); e("v_lshl_add_u32 v6, v5, 4, v6"); e("v_add_u32 v6, s43, v6")
    lo32()
    e(f"ds_write_b128 v6, v[64:67] offset:{QP}")
    full()
    e("s_waitcnt lgkmcnt(0)")
    stamp(1)
    e("s_barrier")
    e(f"s_setprio {hprio2}")
    e(f"s_cmp_lg_u32 s45, {9 if noinit else 3}")
    e("s_cbranch_scc1 L_noinit")
    e("s_lshl_b32 s43, s2, 11"); e(f"s_add_u32 s43, s43, {OUTB}")
    e("v_lshl_add_u32 v12, v0, 4, s43")
    for r in range(8, 12): e(f"v_mov_b32 v{r}, -1")
    e("global_store_dwordx4 v12, v[8:11], s[38:39] sc1")
    e("global_store_dwordx4 v12, v[8:11], s[38:39] offset:1024 sc1")
    e("s_lshl_b32 s43, s2, 7"); e(f"s_add_u32 s43, s43, {FLAG}"); e("v_mov_b32 v12, s43")
    e("s_waitcnt vmcnt(0)")
    e("s_mov_b64 exec, 1")
    e("global_store_dwordx2 v12, v[24:25], s[38:39] sc1")
    full()
    e("L_noinit:")
    e("s_barrier")
    e(f"s_cmp_ge_u32 s2, {0 if noffn else NFFN}")
    e("s_cbranch_scc1 L_wo")

    e("v_lshrrev_b32 v6, 5, v0"); e("v_and_b32 v7, 31, v0")
    e("s_lshl_b32 s43, s45, 11")
    e("v_lshlrev_b32 v8, 10, v6"); e("v_lshl_add_u32 v8, v7, 4, v8"); e("v_add_u32 v8, s43, v8")
    e("global_load_dwordx4 v[96:99], v8, s[16:17] nt")
    e("global_load_dwordx4 v[100:103], v8, s[16:17] offset:512 nt")
    e("s_lshl_b32 s43, s45, 1"); e("v_add_u32 v6, s43, v6"); e(f"v_mul_u32_u24 v11, {XA_STRIDE}, v6"); e("v_lshl_add_u32 v11, v7, 4, v11")
    e("v_lshrrev_b32 v6, 2, v4"); e("v_and_b32 v7, 3, v4")
    e("v_lshlrev_b32 v13, 10, v5"); e("v_lshl_add_u32 v13, v6, 7, v13"); e("v_lshl_add_u32 v13, v7, 3, v13")
    e("v_lshlrev_b32 v15, 11, v5"); e("v_lshl_add_u32 v15, v6, 8, v15"); e("v_lshl_add_u32 v15, v7, 3, v15")
    e("v_and_b32 v6, 7, v4"); e(f"v_mul_u32_u24 v14, {XA_STRIDE}, v6"); e("v_lshl_add_u32 v14, v5, 4, v14")
    e("s_waitcnt vmcnt(0)")
    layernorm(96, 8, 104, allred32)
    e(f"ds_write_b128 v11, v[96:99] offset:{XA}"); e(f"ds_write_b128 v11, v[100:103] offset:{XA + 512}")
    e("s_waitcnt lgkmcnt(0)")
    hsync_pub(HF)
    e("v_lshrrev_b32 v6, 3, v0"); e("v_and_b32 v7, 7, v0")
    e("s_mul_i32 s43, s45, 458752"); e("s_lshl_b32 s46, s2, 7"); e("s_add_u32 s43, s43, s46")
    e("v_mul_u32_u24 v10, 3584, v6"); e("v_lshl_add_u32 v10, v7, 4, v10"); e("v_add_u32 v10, s43, v10")
    e("s_mov_b32 s8, s28"); e("s_mov_b32 s9, s29"); e("s_mov_b32 s10, 1835008")
    e("s_mov_b32 s48, s30"); e("s_mov_b32 s49, s31"); e("s_mov_b32 s50, 1835008"); e("s_mov_b32 s51, 0x20000")
    e("s_mov_b32 s12, s32"); e("s_mov_b32 s13, s33"); e("s_mov_b32 s14, 1835008"); e("s_mov_b32 s15, 0x20000")
    e("s_lshl_b32 s47, s45, 14"); e(f"s_add_u32 s47, s47, {WT}")
    e("v_lshl_add_u32 v11, v0, 4, s47")
    e("v_add_u32 v13, s47, v13"); e("v_add_u32 v15, s47, v15")
    e("s_lshl_b32 s43, s45, 8"); e("v_add_u32 v14, s43, v14")
    for n in range(32):
        s, m, i = n >> 3, (n >> 2) & 1, n & 3
        if n >= wf_win: e(f"s_waitcnt vmcnt({wf_win-1})")
        e(f"s_mov_b32 s40, {(32*s + 8*i) * 3584}")
        if not nogu: e(f"buffer_load_dwordx4 v[{128+4*n}:{131+4*n}], v10, {'s[8:11]' if m == 0 else 's[48:51]'}, s40 offen nt")
    e("s_waitcnt vmcnt(0)")
    hsync("L_hs1", HF)
    for s in range(4):
        for n in range(8): e(f"ds_write_b128 v11, v[{128+32*s+4*n}:{131+32*s+4*n}] offset:{1024*n}")
        e(f"ds_read_b128 v[16:19], v14 offset:{XA + 64*s}")
        e("s_waitcnt lgkmcnt(0)")
        for m in range(2):
            for ct in range(4):
                r = 128 + 32*s + 16*m + 4*ct
                e(f"ds_read_b64_tr_b16 v[{r}:{r+1}], v13 offset:{4096*m + 32*ct}")
                e(f"ds_read_b64_tr_b16 v[{r+2}:{r+3}], v13 offset:{4096*m + 32*ct + 512}")
            e("s_waitcnt lgkmcnt(0)")
            for ct in range(4):
                r = 128 + 32*s + 16*m + 4*ct
                acc = 64 + 16*m + 4*ct
                c = "0" if s == 0 else f"v[{acc}:{acc+3}]"
                e(f"v_mfma_f32_16x16x32_bf16 v[{acc}:{acc+3}], v[{r}:{r+3}], v[16:19], {c}")
    e("s_lshl_b32 s43, s2, 16"); e("s_lshl_b32 s46, s45, 8"); e("s_add_u32 s43, s43, s46")
    e("v_lshlrev_b32 v10, 10, v5"); e("v_lshl_add_u32 v10, v4, 4, v10"); e("v_add_u32 v10, s43, v10")
    e("v_and_b32 v6, 7, v4"); e("v_lshl_add_u32 v6, v5, 3, v6"); e("v_lshlrev_b32 v6, 4, v6"); e(f"v_add_u32 v6, {HP}, v6")
    e("s_lshl_b32 s43, s45, 12"); e("v_add_u32 v7, s43, v6")
    n8()
    for tl in range(8): e(f"ds_write_b128 v7, v[{64+4*tl}:{67+4*tl}] offset:{512*tl}")
    full()
    e("s_waitcnt lgkmcnt(0)")
    hsync_pub(HF2)
    for t in range(16):
        if t >= wf_win: e(f"s_waitcnt vmcnt({wf_win-1})")
        e(f"s_mov_b32 s40, {t*4096}")
        if not nodn: e(f"buffer_load_dwordx4 v[{128+4*t}:{131+4*t}], v10, s[12:15], s40 offen nt")
    hsync("L_hs2", HF2)
    for tl in range(8):
        for w in range(4): e(f"ds_read_b128 v[{192+4*w}:{195+4*w}], v6 offset:{4096*w + 512*tl}")
        e("s_waitcnt lgkmcnt(0)")
        for r in range(4):
            e(f"v_add_f32 v{192+r}, v{192+r}, v{196+r}"); e(f"v_add_f32 v{200+r}, v{200+r}, v{204+r}")
            e(f"v_add_f32 v{64+4*tl+r}, v{192+r}, v{200+r}")
    e("s_mov_b32 s43, " + f2u(-2 * 0.7978845608028654 * 1.4426950408889634))
    e("s_mov_b32 s46, " + f2u(-2 * 0.7978845608028654 * 1.4426950408889634 * 0.044715))
    e("v_mov_b32 v45, s43")
    e("v_and_b32 v8, 7, v4"); e(f"v_mul_u32_u24 v8, {HA_STRIDE}, v8"); e("v_lshl_add_u32 v9, v5, 3, v8"); e("v_lshl_add_u32 v8, v5, 4, v8")
    for ct in range(4):
        for rr in range(4):
            x, u = 64 + 4*ct + rr, 80 + 4*ct + rr
            rbf16(x, x); rbf16(u, u)
            e(f"v_mul_f32 v42, v{x}, v{x}")
            e("v_fma_f32 v42, v42, s46, v45")
            e(f"v_mul_f32 v42, v42, v{x}")
            e("v_exp_f32 v42, v42")
            e("v_add_f32 v42, 1.0, v42")
            e("v_rcp_f32 v42, v42")
            e(f"v_mul_f32 v42, v42, v{x}")
            rbf16(42, 42)
            e(f"v_mul_f32 v{x}, v42, v{u}")
        x = 64 + 4*ct
        e(f"v_cvt_pk_bf16_f32 v{x}, v{x}, v{x+1}"); e(f"v_cvt_pk_bf16_f32 v{x+1}, v{x+2}, v{x+3}")
        e(f"ds_write_b64 v9, v[{x}:{x+1}] offset:{HA + 32*ct}")
    e("s_waitcnt vmcnt(0)")
    for t in range(16): e(f"ds_write_b128 v11, v[{128+4*t}:{131+4*t}] offset:{1024*t}")
    e("s_waitcnt lgkmcnt(0)")
    e(f"ds_read_b128 v[16:19], v8 offset:{HA}"); e(f"ds_read_b128 v[20:23], v8 offset:{HA + 64}")
    for ct in range(8):
        for s in range(2):
            r = 128 + 8*ct + 4*s
            e(f"ds_read_b64_tr_b16 v[{r}:{r+1}], v15 offset:{8192*s + 32*ct}")
            e(f"ds_read_b64_tr_b16 v[{r+2}:{r+3}], v15 offset:{8192*s + 32*ct + 1024}")
        if ct & 1: e("s_waitcnt lgkmcnt(0)")
    for ct in range(8):
        acc = 64 + 4*ct
        e(f"v_mfma_f32_16x16x32_bf16 v[{acc}:{acc+3}], v[{128+8*ct}:{131+8*ct}], v[16:19], 0")
        e(f"v_mfma_f32_16x16x32_bf16 v[{acc}:{acc+3}], v[{132+8*ct}:{135+8*ct}], v[20:23], v[{acc}:{acc+3}]")
    e("s_lshl_b32 s43, s2, 14"); e("s_lshl_b32 s46, s45, 9"); e("s_add_u32 s43, s43, s46"); e(f"s_add_u32 s43, s43, {FPART}")
    e("v_and_b32 v6, 7, v4"); e("v_lshlrev_b32 v6, 11, v6"); e("v_lshl_add_u32 v6, v5, 4, v6"); e("v_add_u32 v6, s43, v6")
    e("s_lshl_b32 s43, s2, 7"); e("s_lshl_b32 s46, s45, 3"); e("s_add_u32 s43, s43, s46"); e(f"s_add_u32 s43, s43, {FFLAG}"); e("v_mov_b32 v8, s43")
    n8()
    for ct in range(8):
        if not nofp: e(f"global_store_dwordx4 v6, v[{64+4*ct}:{67+4*ct}], s[38:39] offset:{64*ct} sc1")
    e("s_waitcnt vmcnt(0)")
    e("s_mov_b64 exec, 1")
    e("global_store_dwordx2 v8, v[24:25], s[38:39] sc1")
    full()
    stamp(2)

    e("L_wo:")
    e("s_mov_b32 s8, s24"); e("s_mov_b32 s9, s25"); e("s_mov_b32 s10, 0x400000"); e("s_mov_b32 s11, 0x20000")
    e("s_lshl_b32 s43, s5, 17"); e("s_lshl_b32 s46, s45, 8"); e("s_add_u32 s43, s43, s46")
    e("v_lshlrev_b32 v2, 15, v5"); e("v_lshl_add_u32 v2, v4, 4, v2"); e("v_add_u32 v2, s43, v2")
    for t in range(32):
        if t >= wo_win: e(f"s_waitcnt vmcnt({wo_win-1})")
        if t % 4 == 0: e(f"s_mov_b32 s40, {t*1024}")
        if not nowo: e(f"buffer_load_dwordx4 v[{128+4*t}:{131+4*t}], v2, s[8:11], s40 offen offset:{(t&3)*1024} nt")
    stamp(3)

    def tagpoll(label, nload):
        if nopoll: return
        e(f"s_mov_b32 s44, {spin}")
        e(f"{label}:")
        for k in range(nload): e(f"global_load_dwordx2 v[{44+2*k}:{45+2*k}], v{40+k}, s[38:39] sc1")
        e("s_waitcnt vmcnt(0)")
        for k in range(nload):
            e(f"v_xor_b32 v{44+2*k}, v{44+2*k}, v24"); e(f"v_xor_b32 v{45+2*k}, v{45+2*k}, v25")
            e(f"v_or_b32 v{44+2*k}, v{44+2*k}, v{45+2*k}")
            if k: e(f"v_or_b32 v44, v44, v{44+2*k}")
        e("v_cmpx_ne_u32 vcc, 0, v44")
        e("s_sub_u32 s44, s44, 1")
        e(f"s_cbranch_execz {label}_ok")
        e(f"s_sleep {slp}")
        e("s_cmp_lg_u32 s44, 0")
        e(f"s_cbranch_scc1 {label}")
        e(f"{label}_ok:")
        full()
    e("s_cmp_ge_u32 s45, 2"); e("s_cbranch_scc1 L_nog")
    e("v_mov_b32 v40, 0")
    e(f"s_mov_b32 s44, {spin}")
    e("L_pg:")
    e(f"ds_read_b32 v41, v40 offset:{PG}")
    e("s_waitcnt lgkmcnt(0)")
    e("v_readfirstlane_b32 s46, v41")
    e("s_cmp_lg_u32 s46, 0"); e("s_cbranch_scc1 L_pg_ok")
    e("s_sleep 32")
    e("s_sub_u32 s44, s44, 1"); e("s_cmp_lg_u32 s44, 0"); e("s_cbranch_scc1 L_pg")
    e("L_pg_ok:")
    e("s_cmp_lg_u32 s45, 1"); e("s_cbranch_scc1 L_noepoch")
    e("s_cmp_lg_u32 s2, 0"); e("s_cbranch_scc1 L_noepoch")
    e("v_lshlrev_b32 v40, 7, v0"); e(f"v_add_u32 v40, {FLAG}, v40")
    for k in range(1, 4): e(f"v_add_u32 v{40+k}, {8192*k}, v40")
    tagpoll("L_pollE", 4)
    e(f"v_mov_b32 v40, {EPOCH}")
    e("s_mov_b64 exec, 1")
    e("global_store_dwordx2 v40, v[24:25], s[38:39] sc1")
    full()
    e("L_noepoch:")
    e("s_cmp_lg_u32 s45, 0"); e("s_cbranch_scc1 L_nog")
    e("s_lshl_b32 s43, s4, 12"); e(f"s_add_u32 s43, s43, {FLAG}")
    e("v_lshl_add_u32 v40, v0, 7, s43")
    e("v_subrev_u32 v41, 32, v0"); e(f"v_min_u32 v41, {NFFN-1}, v41")
    e("s_lshr_b32 s43, s5, 3"); e("s_lshl_b32 s43, s43, 3"); e(f"s_add_u32 s43, s43, {FFLAG}")
    e("v_lshl_add_u32 v41, v41, 7, s43")
    e("v_cmp_gt_u32 vcc, 32, v0")
    if not noffn: e("v_cndmask_b32 v40, v41, v40, vcc")
    else: e("v_and_b32 v41, 31, v0"); e("s_lshl_b32 s43, s4, 12"); e(f"s_add_u32 s43, s43, {FLAG}"); e("v_lshl_add_u32 v40, v41, 7, s43")
    tagpoll("L_pollG", 1)
    e("s_lshl_b32 s43, s4, 11"); e("s_lshl_b32 s46, s5, 6"); e("s_add_u32 s43, s43, s46"); e(f"s_add_u32 s43, s43, {FPART}")
    e("v_lshrrev_b32 v40, 2, v0"); e("v_lshlrev_b32 v40, 14, v40"); e("v_and_b32 v41, 3, v0"); e("v_lshl_add_u32 v40, v41, 4, v40")
    e("v_add_u32 v40, s43, v40"); e(f"v_add_u32 v41, {16*16384}, v40")
    for r in range(52, 56): e(f"v_mov_b32 v{r}, 0")
    if not nofr: e("global_load_dwordx4 v[48:51], v40, s[38:39] sc1")
    e("s_mov_b32 exec_hi, 0xffff")
    if not nofr: e("global_load_dwordx4 v[52:55], v41, s[38:39] sc1")
    full()
    e("s_waitcnt vmcnt(0)")
    for r in range(4): e(f"v_add_f32 v{48+r}, v{48+r}, v{52+r}")
    for ctrl in ("row_ror:4", "row_ror:8"):
        for r in range(4): dpp_add(48 + r, ctrl)
    for r in range(4): xswap("v_add_f32", 48 + r, 44 + r, 16)
    for r in range(4): xswap("v_add_f32", 48 + r, 44 + r, 32)
    for r in range(4):
        y = 48 + r
        rbf16(y, y)
        e(f"v_mul_f32 v42, s6, v{y}")
        e("v_exp_f32 v42, -v42")
        e("v_add_f32 v42, 1.0, v42")
        e("v_rcp_f32 v42, v42")
        e(f"v_mul_f32 v{y}, v42, v{y}")
        rbf16(y, y)
    e("v_lshlrev_b32 v8, 4, v0")
    e("s_mov_b64 exec, 15")
    e(f"ds_write_b128 v8, v[48:51] offset:{GV}")
    full()
    e("L_nog:")
    stamp(4)
    e("s_lshl_b32 s43, s2, 11"); e("s_lshl_b32 s46, s45, 9"); e("s_add_u32 s43, s43, s46"); e(f"s_add_u32 s43, s43, {OUTB}")
    e("v_lshlrev_b32 v12, 5, v4"); e("v_lshl_add_u32 v12, v5, 4, v12"); e("v_add_u32 v12, s43, v12")
    e("v_lshlrev_b32 v6, 3, v0")
    e("s_lshl_b32 s43, s45, 9")
    e("v_add_u32 v7, s43, v6")
    e("v_lshl_add_u32 v8, v5, 7, s43")
    e("v_mov_b32 v9, 0")
    e("v_mov_b32 v13, 0x7fc00000")
    e("s_waitcnt vmcnt(0) lgkmcnt(0)")
    stamp(5, True)
    e("s_setprio 3")
    e("s_barrier")
    e(f"ds_read_b128 v[16:19], v9 offset:{ML}")
    e(f"ds_read_b128 v[20:23], v9 offset:{ML+16}")
    for w in range(4): e(f"ds_read_b64 v[{24+2*w}:{25+2*w}], v6 offset:{OP + 512*w}")
    e("s_waitcnt lgkmcnt(4)")
    e("v_max3_f32 v40, v16, v17, v18"); e("v_max_f32 v40, v40, v19")
    for w in range(4): e(f"v_sub_f32 v{16+w}, v{16+w}, v40")
    for w in range(4): e(f"v_mul_f32 v{16+w}, s6, v{16+w}")
    for w in range(4): e(f"v_exp_f32 v{16+w}, v{16+w}")
    e("v_mul_f32 v41, v16, v20"); e("v_fmac_f32 v41, v17, v21"); e("v_fmac_f32 v41, v18, v22"); e("v_fmac_f32 v41, v19, v23")
    e("v_rcp_f32 v41, v41")
    e("s_waitcnt lgkmcnt(0)")
    e("v_mul_f32 v42, v16, v24"); e("v_mul_f32 v43, v16, v25")
    for w in range(1, 4):
        e(f"v_fmac_f32 v42, v{16+w}, v{24+2*w}"); e(f"v_fmac_f32 v43, v{16+w}, v{25+2*w}")
    e("v_mul_f32 v42, v42, v41"); e("v_mul_f32 v43, v43, v41")
    e("v_cvt_pk_bf16_f32 v42, v42, v42"); e("v_cvt_pk_bf16_f32 v43, v43, v43")
    e(f"ds_write_b64 v7, v[42:43] offset:{OD}")
    e("s_waitcnt lgkmcnt(0)")
    for j in range(8): e(f"ds_read_b128 v[{96+4*j}:{99+4*j}], v8 offset:{OD + 16*j}")
    for t in range(32):
        if t % 4 == 0: e(f"s_waitcnt lgkmcnt({7 - t//4})")
        onehot_step(96 + t, 128 + 4*t, 64, 72 + 4*(t & 3), first=(t == 0))
    for r in range(4):
        e(f"v_cmp_eq_u32 vcc, -1, v{64+r}")
        e(f"v_cndmask_b32 v{64+r}, v{64+r}, v13, vcc")
    lo32()
    e("global_store_dwordx4 v12, v[64:67], s[38:39] sc1")
    full()
    stamp(6)
    e("L_fin:")
    flush_stamps()
    e("L_end:")
    e("s_endpgm")
    e('.section .rodata,"a"')
    e(".p2align 6")
    e(f".amdhsa_kernel {NAME}")
    e(".amdhsa_next_free_vgpr 256")
    e(".amdhsa_next_free_sgpr 90")
    e(".amdhsa_accum_offset 256")
    e(".amdhsa_group_segment_fixed_size 0")
    e(".amdhsa_kernarg_size 96")
    e(".amdhsa_user_sgpr_count 2")
    e(".amdhsa_user_sgpr_kernarg_segment_ptr 1")
    e(".amdhsa_system_sgpr_workgroup_id_x 1")
    e(".end_amdhsa_kernel")
    return a.finish()

if __name__ == "__main__":
    cfg = eval("dict(" + (sys.argv[2] if len(sys.argv) > 2 else "") + ")")
    open(sys.argv[1], "w").write(gen(**cfg))
```

```python
import sys, struct
from asmlib import Asm
from gen_kernel import HEADER, NAME

QP, QB, XD, OP, ML, GV, HF, HF2, PG = 0, 2048, 3072, 5120, 7168, 7232, 7296, 7328, 7360
OD, HA, XA, WT = 7424, 9472, 10624, 18944
XA_STRIDE = 1040
HA_STRIDE = 144
HP = WT + 4 * 16384
EPOCH, FLAG, FFLAG, FPART, OUTB, STAMP = 0x0, 0x1000, 0x9000, 0x10000, 0x80000, 0x200000
LOG2E = 0x3fb8aa3b
SCALE = 0x3db504f3
NFFN = 28

def f2u(x):
    return "0x%08x" % struct.unpack("<I", struct.pack("<f", x))[0]

def gen(ring0=5, nlds=3, win=5, winv=None, sweeps=2, kpat="r8", ws_win=5, wh_win=3, wo_win=2, wf_win=2, stamps=False, spin=1 << 20, slp=100,
        noffn=False, fslp=0, nopoll=False, nowo=False, sprio=3, hprio=2, hprio2=0, trig=9, quota=2, nocomp=False, nowq=False, noinit=False, nofp=False, nofr=False, nogu=False, nodn=False, extra=0, dbg=False, dbl=0, polk='nt', polv='nt'):
    LDS_BYTES = max(HP + 16384, WT + nlds * 32768)
    assert LDS_BYTES <= 163840
    ds = 2
    a = Asm()
    e = a
    winv = win if winv is None else winv
    e(HEADER.strip())
    e(f"; @launch grid=(256,1,1) block=(512,1,1) lds={LDS_BYTES}")
    e('.amdgcn_target "amdgcn-amd-amdhsa--gfx950"')
    e(".text")
    e(f".globl {NAME}")
    e(".p2align 8")
    e(f".type {NAME},@function")
    e(f"{NAME}:")
    e("s_cmp_ge_u32 s2, 256")
    e("s_cbranch_scc1 L_end")
    if stamps:
        for k in range(72, 86): e(f"s_mov_b32 s{k}, 0")
        e("s_memrealtime s[70:71]")
    if dbl: e("s_memrealtime s[56:57]")
    e("s_load_dwordx16 s[16:31], s[0:1], 0")
    e("s_load_dwordx8 s[32:39], s[0:1], 64")
    e("v_lshrrev_b32 v1, 6, v0")
    e("v_and_b32 v0, 63, v0")
    e("v_readfirstlane_b32 s3, v1")
    e("v_and_b32 v4, 15, v0")
    e("v_lshrrev_b32 v5, 4, v0")
    e("s_lshr_b32 s4, s2, 5")
    e("s_and_b32 s5, s2, 31")
    e(f"s_mov_b32 s6, {LOG2E}")
    e("s_mov_b32 s7, 0xffff0000")

    def masks():
        e("v_and_b32 v6, 1, v4")
        e("v_lshlrev_b32 v6, 4, v6")
        e("v_mov_b32 v7, 0xffff")
        e("v_lshlrev_b32 v6, v6, v7")
        e("v_lshrrev_b32 v7, 1, v4")
        for q in range(4):
            e(f"v_cmp_eq_u32 vcc, {q}, v7")
            e(f"v_cndmask_b32 v{32+q}, 0, v6, vcc")

    def stamp(idx, wait=False):
        if not stamps: return
        e(f"s_memrealtime s[{70+2*idx}:{71+2*idx}]")
        if wait: e("s_waitcnt lgkmcnt(0)")
    def flush_stamps():
        if not stamps: return
        e("s_lshl_b32 s64, s2, 3"); e("s_add_u32 s64, s64, s3"); e("s_lshl_b32 s64, s64, 7")
        e(f"s_add_u32 s64, s64, {STAMP}")
        e("s_waitcnt lgkmcnt(0)")
        e("s_mov_b64 exec, 1")
        e("v_mov_b32 v62, s64")
        if dbg:
            e("s_not_b32 s70, s70")
            e("s_cmp_lg_u32 s3, 0"); e("s_cbranch_scc1 L_end"); e("v_mov_b32 v62, 0")
            for idx in (0, 1, 3, 5, 7):
                e(f"v_mov_b32 v60, s{70+2*idx}")
                e(f"global_atomic_umax v62, v60, s[36:37] offset:{4*idx}")
                e("s_nop 1")
            return
        for idx in range(8):
            e(f"v_mov_b32 v60, s{70+2*idx}"); e(f"v_mov_b32 v61, s{71+2*idx}")
            e(f"global_store_dwordx2 v62, v[60:61], s[38:39] offset:{8*idx}")
            e("s_nop 1")

    def xswap(op, dst, tmp, kind, em=None):
        em = em or e
        em(f"v_mov_b32 v{tmp}, v{dst}")
        em(f"v_permlane{kind}_swap_b32 v{dst}, v{tmp}")
        em(f"{op} v{dst}, v{dst}, v{tmp}")

    def dpp_add(dst, ctrl):
        e(f"v_add_f32_dpp v{dst}, v{dst}, v{dst} {ctrl} row_mask:0xf bank_mask:0xf")

    def rbf16(dst, src):
        e(f"v_cvt_pk_bf16_f32 v{dst}, v{src}, v{src}")
        e(f"v_and_b32 v{dst}, s7, v{dst}")

    def onehot_step(dupreg, breg, acc, abuf, first=False):
        for q in range(4):
            e(f"v_and_b32 v{abuf+q}, v{dupreg}, v{32+q}")
        c = "0" if first else f"v[{acc}:{acc+3}]"
        e(f"v_mfma_f32_16x16x32_bf16 v[{acc}:{acc+3}], v[{abuf}:{abuf+3}], v[{breg}:{breg+3}], {c}")

    def lo32():
        e("s_mov_b32 exec_lo, -1"); e("s_mov_b32 exec_hi, 0")
    def n8():
        e("s_mov_b32 exec_lo, 0x00ff00ff"); e("s_mov_b32 exec_hi, 0x00ff00ff")
    def full():
        e("s_mov_b64 exec, -1")

    e("s_cmp_ge_u32 s3, 4")
    e("s_cbranch_scc1 L_helper")

    if sprio: e(f"s_setprio {sprio}")
    RB = 256 - ring0 * 32
    def kreg(gs, i): return RB + gs * 32 + i * 4
    def vreg(gs, i): return RB + gs * 32 + 16 + i * 4
    if kpat == "r16":
        e("v_lshlrev_b32 v2, 8, v4"); e("v_lshl_add_u32 v2, v5, 4, v2")
        koff = [0, 64, 128, 192]
    else:
        e("v_and_b32 v2, 7, v4"); e("v_lshlrev_b32 v2, 8, v2"); e("v_lshl_add_u32 v2, v5, 4, v2")
        e("v_lshrrev_b32 v3, 3, v4"); e("v_lshl_add_u32 v2, v3, 6, v2")
        koff = [0, 128, 2048, 2176]
    e("v_lshlrev_b32 v3, 10, v5"); e("v_lshl_add_u32 v3, v4, 4, v3")
    e("s_lshl_b32 s40, s3, 12")
    e("s_lshl_b32 s41, s2, 20")
    e("s_mov_b32 s10, 0x100000"); e("s_mov_b32 s11, 0x20000")
    e("s_mov_b32 s14, 0x100000"); e("s_mov_b32 s15, 0x20000")
    e("s_waitcnt lgkmcnt(0)")
    e("s_add_u32 s8, s18, s41"); e("s_addc_u32 s9, s19, 0")
    e("s_add_u32 s12, s20, s41"); e("s_addc_u32 s13, s21, 0")
    order = []
    known = [0]
    def wait_for(ids):
        last = max(order.index(i) for i in ids) + 1
        if last > known[0]:
            e(f"s_waitcnt vmcnt({len(order) - last})")
            known[0] = last
    def throttle(w):
        if len(order) - known[0] >= w:
            e(f"s_waitcnt vmcnt({w-1})")
            known[0] = len(order) - (w - 1)
    def load(n, kind, i, slot, w):
        throttle(w)
        va, srd, off = ("v2", "s[8:11]", koff[i]) if kind == "K" else ("v3", "s[12:15]", 256 * i)
        if isinstance(slot, int):
            r = kreg(slot, i) if kind == "K" else vreg(slot, i)
            e(f"buffer_load_dwordx4 v[{r}:{r+3}], {va}, {srd}, s40 offen offset:{off} {polk if kind == 'K' else polv}")
        else:
            dst = slot[1] * 8192 + (0 if kind == "K" else 4096) + 1024 * i - off
            e(f"s_add_u32 m0, s46, {dst + 4096}")
            e("s_nop 0")
            e(f"buffer_load_dwordx4 {va}, {srd}, s40 offen offset:{off} {polk if kind == 'K' else polv} lds")
        order.append((n, kind, i))
        if kind == "V" and i == 3: advance()
    def advance():
        e(f"s_add_u32 s40, s40, {sweeps*16384}")
        if sweeps > 1:
            e("s_cmp_ge_u32 s40, 0x100000")
            e(f"s_cselect_b32 s41, {0x100000-16384}, 0")
            e("s_sub_u32 s40, s40, s41")
    def setup_rest():
        masks()
        for r in range(64, 68): e(f"v_mov_b32 v{r}, 0")
        e("v_mov_b32 v68, 0xff800000")
        e("v_mov_b32 v69, 0")
        e(f"s_mov_b32 s42, {SCALE}")
        e(f"s_mul_i32 s46, s3, {nlds*8192}"); e(f"s_add_u32 s46, s46, {WT - 4096}")
        e("v_lshl_add_u32 v70, v0, 4, s46")
        e("v_lshlrev_b32 v71, 3, v0")
        e("s_lshl_b32 s43, s3, 8"); e(f"s_add_u32 s43, s43, {QB}")
        e("v_lshl_add_u32 v31, v0, 2, s43")
        e("v_lshl_add_u32 v15, v5, 4, s43")
        if kpat == "r8":
            e("v_and_b32 v9, 1, v4"); e("v_lshl_add_u32 v15, v9, 6, v15")
        e("v_and_b32 v8, 3, v0")
        e("s_lshl_b32 s43, s4, 10"); e("s_lshl_b32 s45, s5, 5"); e("s_add_u32 s43, s43, s45")
        e("v_lshl_add_u32 v9, v8, 3, s43")
        e("s_lshl_b32 s43, s4, 16"); e("s_lshl_b32 s45, s5, 6"); e("s_add_u32 s43, s43, s45"); e(f"s_add_u32 s43, s43, {OUTB}")
        e("v_lshrrev_b32 v12, 2, v0"); e("v_lshlrev_b32 v12, 11, v12"); e("v_lshl_add_u32 v12, v8, 4, v12"); e("v_add_u32 v12, s43, v12")
        e("v_add_u32 v14, 0x8000, v12")
        e("v_lshlrev_b32 v13, 4, v8")
        e("v_lshlrev_b32 v6, 5, v4"); e("v_lshl_add_u32 v6, v5, 4, v6")
        e("s_lshl_b32 s43, s3, 9"); e("v_add_u32 v6, s43, v6")
        e("s_lshl_b32 s43, s3, 2"); e("v_mov_b32 v7, s43")
        e("global_load_dwordx2 v[10:11], v9, s[16:17]")
        order.append(("x", 0, 0))
    B = ring0 + nlds
    for n in range(B):
        slot = n if n < ring0 else ("lds", n - ring0)
        for kind in "KV":
            for i in range(4):
                if len(order) == ws_win: setup_rest()
                load(n, kind, i, slot, ws_win)
    assert 4 <= ws_win < 8
    stamp(1)
    e("s_barrier")
    stamp(2)
    for w in range(4):
        e(f"ds_read_b64 v[{40+2*w}:{41+2*w}], v71 offset:{QP + w*512}")
    e("s_waitcnt lgkmcnt(0)")
    e("v_add_f32 v40, v40, v42"); e("v_add_f32 v41, v41, v43")
    e("v_add_f32 v44, v44, v46"); e("v_add_f32 v45, v45, v47")
    e("v_add_f32 v40, v40, v44"); e("v_add_f32 v41, v41, v45")
    e("v_cvt_pk_bf16_f32 v40, v40, v41")
    e("ds_write_b32 v31, v40")
    e("s_waitcnt lgkmcnt(0)")
    if kpat == "r16":
        for s in range(4): e(f"ds_read_b128 v[{16+4*s}:{19+4*s}], v15 offset:{64*s}")
    else:
        for s in range(2): e(f"ds_read_b128 v[{16+4*s}:{19+4*s}], v15 offset:{128*s}")
    e("s_waitcnt lgkmcnt(0)")

    busy = {(sl, k) for sl in range(ring0) for k in "KV"}
    pend = []
    def try_issue(maxn):
        k = 0
        while pend and k < maxn and (pend[0][3], pend[0][1]) not in busy:
            n, kind, i, slot = pend.pop(0)
            load(n, kind, i, slot, win if kind == "K" else winv)
            if i == 3: busy.add((slot, kind))
            k += 1
        return k

    def group(n, gs, q):
        wait_for([(n, "K", i) for i in range(4)])
        if kpat == "r16":
            for s in range(4):
                r = kreg(gs, s)
                c = "0" if s == 0 else "v[36:39]"
                e(f"v_mfma_f32_16x16x32_bf16 v[36:39], v[{r}:{r+3}], v[{16+4*s}:{19+4*s}], {c}")
        else:
            r = [kreg(gs, s) for s in range(4)]
            e(f"v_mfma_f32_16x16x32_bf16 v[36:39], v[{r[0]}:{r[0]+3}], v[16:19], 0")
            e(f"v_mfma_f32_16x16x32_bf16 v[56:59], v[{r[2]}:{r[2]+3}], v[16:19], 0")
            e(f"v_mfma_f32_16x16x32_bf16 v[36:39], v[{r[1]}:{r[1]+3}], v[20:23], v[36:39]")
            e(f"v_mfma_f32_16x16x32_bf16 v[56:59], v[{r[3]}:{r[3]+3}], v[20:23], v[56:59]")
        busy.discard((gs, "K"))
        C = []; c = C.append
        if kpat == "r8":
            for r in range(4): c(f"v_permlane32_swap_b32 v{36+r}, v{56+r}")
            for r in range(4): c(f"v_mov_b32_dpp v{36+r}, v{36+r} quad_perm:[0,0,2,2] row_mask:0xf bank_mask:0xf")
            for r in range(4): c(f"v_add_f32_dpp v{36+r}, v{56+r}, v{36+r} quad_perm:[1,1,3,3] row_mask:0xf bank_mask:0xf")
        c("v_cvt_pk_bf16_f32 v40, v36, v37"); c("v_cvt_pk_bf16_f32 v41, v38, v39")
        c("v_lshlrev_b32 v44, 16, v40"); c("v_and_b32 v45, s7, v40")
        c("v_lshlrev_b32 v46, 16, v41"); c("v_and_b32 v47, s7, v41")
        for r in range(44, 48): c(f"v_mul_f32 v{r}, s42, v{r}")
        c("v_cvt_pk_bf16_f32 v40, v44, v45"); c("v_cvt_pk_bf16_f32 v41, v46, v47")
        c("v_lshlrev_b32 v44, 16, v40"); c("v_and_b32 v45, s7, v40")
        c("v_lshlrev_b32 v46, 16, v41"); c("v_and_b32 v47, s7, v41")
        c("v_max3_f32 v48, v44, v45, v46")
        c("v_max3_f32 v48, v48, v47, v68")
        xswap("v_max_f32", 48, 49, 32, c)
        xswap("v_max_f32", 48, 49, 16, c)
        c("v_sub_f32 v50, v68, v48")
        c("v_mul_f32 v51, s6, v48")
        c("v_mul_f32 v50, s6, v50")
        c("v_mov_b32 v68, v48")
        for r in range(4): c(f"v_fma_f32 v{44+r}, v{44+r}, s6, -v51")
        c("v_exp_f32 v50, v50")
        for r in range(4): c(f"v_exp_f32 v{44+r}, v{44+r}")
        for r in range(64, 68): c(f"v_mul_f32 v{r}, v50, v{r}")
        for r in range(4): c(f"v_cvt_pk_bf16_f32 v{52+r}, v{44+r}, v{44+r}")
        c("v_add_f32 v44, v44, v45"); c("v_add_f32 v46, v46, v47")
        c("v_fma_f32 v69, v69, v50, v44")
        c("v_add_f32 v69, v69, v46")
        for r in range(4):
            for qq in range(4): c(f"v_and_b32 v{72+4*r+qq}, v{52+r}, v{32+qq}")
        npos = min(q, 4)
        pos = [k * len(C) // npos for k in range(npos)] if npos else []
        for k, ins in enumerate(C):
            if k in pos: q -= try_issue(1)
            if not nocomp: e(ins)
        wait_for([(n, "V", i) for i in range(4)])
        for r in range(4):
            v = vreg(gs, r)
            e(f"v_mfma_f32_16x16x32_bf16 v[64:67], v[{72+4*r}:{75+4*r}], v[{v}:{v+3}], v[64:67]")
        busy.discard((gs, "V"))
        try_issue(q if q >= 4 else 0)

    def queue(n, slot):
        for kind in "KV":
            for i in range(4): pend.append((n, kind, i, slot))
    ng = 64
    queue(B, 0); queue(B + 1, 1)
    if extra: queue(B + 2, 2)
    lo = 2 + extra
    for n in range(ring0):
        group(n, n, 4 if n == 0 else quota)
    for j in range(nlds):
        n = ring0 + j
        slot = lo + (j % (ring0 - lo))
        wait_for([(n, kind, i) for kind in "KV" for i in range(4)])
        for p in range(8):
            r = kreg(slot, p)
            e(f"ds_read_b128 v[{r}:{r+3}], v70 offset:{4096 + j*8192 + p*1024}")
        e("s_waitcnt lgkmcnt(0)")
        if j == nlds - 1: e("s_barrier")
        group(n, slot, quota)
    if nlds == 0: e("s_barrier")
    if extra:
        group(B, 0, 8)
        while pend: assert try_issue(99)
        B = B + 1
        sl = [1, 2]
    else:
        while pend: assert try_issue(99)
        sl = [0, 1]
    nxt = B
    nrel = ng - B - 2
    nfull, rem = nrel // 2, nrel % 2
    def steady(n):
        queue(n + 2, sl[(n - B) & 1]); group(n, sl[(n - B) & 1], 8); assert not pend
    known[0] = min(known[0], len(order) - min(win, winv) + 1)
    stamp(6)
    e(f"s_mov_b32 s44, {nfull}")
    e("L_loop:")
    lines0 = len(a.lines)
    k0 = len(order) - known[0]
    steady(B); steady(B + 1)
    assert len(order) - known[0] == k0, (k0, len(order) - known[0])
    e(f"s_cmp_lg_u32 s44, {trig}"); e("s_cbranch_scc1 L_notrig")
    e("s_mov_b64 exec, 1"); e("v_mov_b32 v40, 0"); e("v_mov_b32 v41, 1"); e(f"ds_write_b32 v40, v41 offset:{PG}"); full()
    stamp(7)
    e("L_notrig:")
    e("s_sub_u32 s44, s44, 1"); e("s_cmp_lg_u32 s44, 0"); e("s_cbranch_scc1 L_loop")
    n = B + 2
    for _ in range(rem): steady(n); n += 1
    group(n, sl[(n - B) & 1], 0); group(n + 1, sl[(n + 1 - B) & 1], 0)
    stamp(3)
    xswap("v_add_f32", 69, 49, 32)
    xswap("v_add_f32", 69, 49, 16)
    lo32()
    e(f"ds_write_b128 v6, v[64:67] offset:{OP}")
    e("s_mov_b64 exec, 1")
    e(f"ds_write_b32 v7, v68 offset:{ML}")
    e(f"ds_write_b32 v7, v69 offset:{ML+16}")
    full()
    e("s_waitcnt lgkmcnt(0)")
    e("s_barrier")
    e("s_cmp_lg_u32 s3, 0")
    e("s_cbranch_scc1 L_fin")
    e(f"ds_read_b128 v[20:23], v13 offset:{GV}")
    e(f"s_mov_b32 s44, {spin}")
    e("L_fpoll:")
    e("global_load_dwordx4 v[40:43], v12, s[38:39] sc1")
    e("global_load_dwordx4 v[44:47], v14, s[38:39] sc1")
    e("s_waitcnt vmcnt(0)")
    e("v_max3_u32 v48, v40, v41, v42"); e("v_max3_u32 v49, v43, v44, v45")
    e("v_max3_u32 v48, v48, v46, v47"); e("v_max_u32 v48, v48, v49")
    e("v_cmpx_eq_u32 vcc, -1, v48")
    e("s_sub_u32 s44, s44, 1")
    e("s_cbranch_execz L_fgo")
    if fslp: e(f"s_sleep {fslp}")
    e("s_cmp_lg_u32 s44, 0")
    e("s_cbranch_scc1 L_fpoll")
    e("L_fgo:")
    full()
    stamp(4)
    for r in range(4): e(f"v_add_f32 v{40+r}, v{40+r}, v{44+r}")
    for ctrl in ("row_ror:4", "row_ror:8"):
        for r in range(4): dpp_add(40 + r, ctrl)
    for kind in (16, 32):
        for r in range(4): e(f"v_mov_b32 v{44+r}, v{40+r}")
        for r in range(4): e(f"v_permlane{kind}_swap_b32 v{40+r}, v{44+r}")
        for r in range(4): e(f"v_add_f32 v{40+r}, v{40+r}, v{44+r}")
    e("s_waitcnt lgkmcnt(0)")
    e("v_cvt_pk_bf16_f32 v40, v40, v41"); e("v_cvt_pk_bf16_f32 v42, v42, v43")
    e("v_and_b32 v41, s7, v40"); e("v_lshlrev_b32 v40, 16, v40")
    e("v_and_b32 v43, s7, v42"); e("v_lshlrev_b32 v42, 16, v42")
    for r in range(4): e(f"v_mul_f32 v{40+r}, v{40+r}, v{20+r}")
    e("v_cvt_pk_bf16_f32 v40, v40, v41"); e("v_cvt_pk_bf16_f32 v42, v42, v43")
    e("v_and_b32 v41, s7, v40"); e("v_lshlrev_b32 v40, 16, v40")
    e("v_and_b32 v43, s7, v42"); e("v_lshlrev_b32 v42, 16, v42")
    e("v_lshlrev_b32 v44, 16, v10"); e("v_and_b32 v45, s7, v10")
    e("v_lshlrev_b32 v46, 16, v11"); e("v_and_b32 v47, s7, v11")
    for r in range(4): e(f"v_add_f32 v{40+r}, v{40+r}, v{44+r}")
    e("v_cvt_pk_bf16_f32 v40, v40, v41"); e("v_cvt_pk_bf16_f32 v41, v42, v43")
    e("s_mov_b64 exec, 15")
    e("global_store_dwordx2 v9, v[40:41], s[34:35]")
    full()
    stamp(5)
    if dbl:
        e("s_memrealtime s[58:59]"); e("s_waitcnt lgkmcnt(0)")
        e("s_sub_u32 s60, s58, s56"); e(f"s_mul_i32 s60, s60, {dbl}"); e("s_add_u32 s60, s60, s58")
        e("L_dbl:")
        e("s_memrealtime s[58:59]"); e("s_waitcnt lgkmcnt(0)")
        e("s_sub_u32 s61, s60, s58"); e("s_cmp_gt_i32 s61, 0"); e("s_cbranch_scc1 L_dbl")
    e("s_branch L_fin" if stamps else "s_endpgm")

    e("L_helper:")
    e(f"s_setprio {hprio}")
    e("s_sub_u32 s45, s3, 4")
    e("s_lshl_b32 s43, s4, 10")
    e("v_lshl_add_u32 v6, v0, 4, s43")
    e("s_lshl_b32 s43, s45, 20"); e("s_lshl_b32 s46, s5, 8"); e("s_add_u32 s43, s43, s46")
    e("v_lshlrev_b32 v2, 18, v5"); e("v_lshl_add_u32 v2, v4, 4, v2"); e("v_add_u32 v2, s43, v2")
    e("s_mov_b32 s10, 0x400000"); e("s_mov_b32 s11, 0x20000")
    e("s_waitcnt lgkmcnt(0)")
    e("s_mov_b32 s8, s22"); e("s_mov_b32 s9, s23")
    e("global_load_dwordx4 v[8:11], v6, s[16:17] nt")
    e(f"s_load_dwordx2 s[52:53], s[38:39], {EPOCH}")
    def wqload(t):
        e(f"s_mov_b32 s40, {t*8192}")
        if not nowq: e(f"buffer_load_dwordx4 v[{128+4*t}:{131+4*t}], v2, s[8:11], s40 offen nt")
    for t in range(wh_win): wqload(t)
    masks()
    e("v_mov_b32 v6, 0"); e(f"ds_write_b32 v6, v6 offset:{PG}")
    e("s_lshl_b32 s43, s45, 3"); e("v_mov_b32 v30, s43")
    e("v_and_b32 v31, 3, v0"); e("v_lshlrev_b32 v31, 3, v31")
    e(f"s_waitcnt vmcnt({wh_win}) lgkmcnt(0)")
    e("s_add_u32 s52, s52, 1"); e("s_addc_u32 s53, s53, 0")
    e("v_mov_b32 v24, s52"); e("v_mov_b32 v25, s53")

    def allred64(r, tmp):
        allred32(r, tmp); xswap("v_add_f32", r, tmp, 32)
    def allred32(r, tmp):
        dpp_add(r, "quad_perm:[1,0,3,2]"); dpp_add(r, "quad_perm:[2,3,0,1]")
        dpp_add(r, "row_half_mirror"); dpp_add(r, "row_mirror")
        xswap("v_add_f32", r, tmp, 16)

    def layernorm(src, ndw, f, red, pack=True, between=None):
        n = 2 * ndw
        for i in range(ndw):
            e(f"v_lshlrev_b32 v{f+2*i}, 16, v{src+i}"); e(f"v_and_b32 v{f+2*i+1}, s7, v{src+i}")
        e(f"v_add_f32 v40, v{f}, v{f+1}"); e(f"v_add_f32 v41, v{f+2}, v{f+3}")
        for i in range(4, n, 2):
            e(f"v_add_f32 v40, v40, v{f+i}"); e(f"v_add_f32 v41, v41, v{f+i+1}")
        e("v_add_f32 v40, v40, v41")
        red(40, 47)
        e(f"v_mul_f32 v40, {f2u(1/512)}, v40")
        e(f"v_sub_f32 v43, v{f}, v40"); e(f"v_sub_f32 v44, v{f+1}, v40")
        e("v_mul_f32 v41, v43, v43"); e("v_mul_f32 v42, v44, v44")
        for i in range(2, n, 2):
            e(f"v_sub_f32 v43, v{f+i}, v40"); e(f"v_sub_f32 v44, v{f+i+1}, v40")
            e("v_fmac_f32 v41, v43, v43"); e("v_fmac_f32 v42, v44, v44")
        e("v_add_f32 v41, v41, v42")
        red(41, 47)
        e(f"v_mul_f32 v41, {f2u(1/512)}, v41")
        rbf16(41, 41); rbf16(40, 40)
        e(f"v_add_f32 v41, {f2u(1e-5)}, v41"); rbf16(41, 41)
        e("v_sqrt_f32 v41, v41"); rbf16(41, 41)
        e("v_rcp_f32 v42, v41")
        for i in range(0, n, 2):
            x0, x1 = f + i, f + i + 1
            e(f"v_sub_f32 v{x0}, v{x0}, v40"); e(f"v_sub_f32 v{x1}, v{x1}, v40")
            e(f"v_cvt_pk_bf16_f32 v43, v{x0}, v{x1}")
            e(f"v_lshlrev_b32 v{x0}, 16, v43"); e(f"v_and_b32 v{x1}, s7, v43")
            e(f"v_mul_f32 v43, v{x0}, v42"); e(f"v_mul_f32 v44, v{x1}, v42")
            e(f"v_fma_f32 v{x0}, -v43, v41, v{x0}"); e(f"v_fma_f32 v{x1}, -v44, v41, v{x1}")
            e(f"v_fma_f32 v{x0}, v{x0}, v42, v43"); e(f"v_fma_f32 v{x1}, v{x1}, v42, v44")
            if pack: e(f"v_cvt_pk_bf16_f32 v{src + i//2}, v{x0}, v{x1}")

    def hsync_pub(base):
        e("s_mov_b64 exec, 1")
        e(f"ds_write_b64 v30, v[24:25] offset:{base}")
        full()
    def hsync(label, base):
        e(f"s_mov_b32 s44, {spin}")
        e(f"{label}:")
        e(f"ds_read_b64 v[40:41], v31 offset:{base}")
        e("s_waitcnt lgkmcnt(0)")
        e("v_cmp_ne_u64 vcc, v[40:41], v[24:25]")
        e("s_sub_u32 s44, s44, 1")
        e(f"s_cbranch_vccz {label}_ok")
        e("s_sleep 2")
        e("s_cmp_lg_u32 s44, 0")
        e(f"s_cbranch_scc1 {label}")
        e(f"{label}_ok:")

    layernorm(8, 4, 16, allred64, pack=False)
    for i in range(8): e(f"v_cvt_pk_bf16_f32 v{16+i}, v{16+i}, v{16+i}")
    e("v_lshlrev_b32 v6, 5, v0")
    e(f"ds_write_b128 v6, v[16:19] offset:{XD}"); e(f"ds_write_b128 v6, v[20:23] offset:{XD+16}")
    e("s_lshl_b32 s43, s45, 9")
    e("v_lshl_add_u32 v7, v5, 7, s43")
    e("s_waitcnt lgkmcnt(0)")
    for j in range(8): e(f"ds_read_b128 v[{96+4*j}:{99+4*j}], v7 offset:{XD + 16*j}")
    e("s_waitcnt lgkmcnt(0)")
    for t in range(32):
        e(f"s_waitcnt vmcnt({min(wh_win - 1, 31 - t)})")
        if t + wh_win < 32: wqload(t + wh_win)
        onehot_step(96 + t, 128 + 4*t, 64, 72 + 4*(t & 3), first=(t == 0))
    e("v_lshlrev_b32 v6, 5, v4"); e("v_lshl_add_u32 v6, v5, 4, v6"); e("v_add_u32 v6, s43, v6")
    lo32()
    e(f"ds_write_b128 v6, v[64:67] offset:{QP}")
    full()
    e("s_waitcnt lgkmcnt(0)")
    stamp(1)
    e("s_barrier")
    e(f"s_setprio {hprio2}")
    e(f"s_cmp_lg_u32 s45, {9 if noinit else 3}")
    e("s_cbranch_scc1 L_noinit")
    e("s_lshl_b32 s43, s2, 11"); e(f"s_add_u32 s43, s43, {OUTB}")
    e("v_lshl_add_u32 v12, v0, 4, s43")
    for r in range(8, 12): e(f"v_mov_b32 v{r}, -1")
    e("global_store_dwordx4 v12, v[8:11], s[38:39] sc1")
    e("global_store_dwordx4 v12, v[8:11], s[38:39] offset:1024 sc1")
    e("s_lshl_b32 s43, s2, 7"); e(f"s_add_u32 s43, s43, {FLAG}"); e("v_mov_b32 v12, s43")
    e("s_waitcnt vmcnt(0)")
    e("s_mov_b64 exec, 1")
    e("global_store_dwordx2 v12, v[24:25], s[38:39] sc1")
    full()
    e("L_noinit:")
    e("s_barrier")
    e(f"s_cmp_ge_u32 s2, {0 if noffn else NFFN}")
    e("s_cbranch_scc1 L_wo")

    e("v_lshrrev_b32 v6, 5, v0"); e("v_and_b32 v7, 31, v0")
    e("s_lshl_b32 s43, s45, 11")
    e("v_lshlrev_b32 v8, 10, v6"); e("v_lshl_add_u32 v8, v7, 4, v8"); e("v_add_u32 v8, s43, v8")
    e("global_load_dwordx4 v[96:99], v8, s[16:17] nt")
    e("global_load_dwordx4 v[100:103], v8, s[16:17] offset:512 nt")
    e("s_lshl_b32 s43, s45, 1"); e("v_add_u32 v6, s43, v6"); e(f"v_mul_u32_u24 v11, {XA_STRIDE}, v6"); e("v_lshl_add_u32 v11, v7, 4, v11")
    e("v_lshrrev_b32 v6, 2, v4"); e("v_and_b32 v7, 3, v4")
    e("v_lshlrev_b32 v13, 10, v5"); e("v_lshl_add_u32 v13, v6, 7, v13"); e("v_lshl_add_u32 v13, v7, 3, v13")
    e("v_lshlrev_b32 v15, 11, v5"); e("v_lshl_add_u32 v15, v6, 8, v15"); e("v_lshl_add_u32 v15, v7, 3, v15")
    e("v_and_b32 v6, 7, v4"); e(f"v_mul_u32_u24 v14, {XA_STRIDE}, v6"); e("v_lshl_add_u32 v14, v5, 4, v14")
    e("s_waitcnt vmcnt(0)")
    layernorm(96, 8, 104, allred32)
    e(f"ds_write_b128 v11, v[96:99] offset:{XA}"); e(f"ds_write_b128 v11, v[100:103] offset:{XA + 512}")
    e("s_waitcnt lgkmcnt(0)")
    hsync_pub(HF)
    e("v_lshrrev_b32 v6, 3, v0"); e("v_and_b32 v7, 7, v0")
    e("s_mul_i32 s43, s45, 458752"); e("s_lshl_b32 s46, s2, 7"); e("s_add_u32 s43, s43, s46")
    e("v_mul_u32_u24 v10, 3584, v6"); e("v_lshl_add_u32 v10, v7, 4, v10"); e("v_add_u32 v10, s43, v10")
    e("s_mov_b32 s8, s28"); e("s_mov_b32 s9, s29"); e("s_mov_b32 s10, 1835008")
    e("s_mov_b32 s48, s30"); e("s_mov_b32 s49, s31"); e("s_mov_b32 s50, 1835008"); e("s_mov_b32 s51, 0x20000")
    e("s_mov_b32 s12, s32"); e("s_mov_b32 s13, s33"); e("s_mov_b32 s14, 1835008"); e("s_mov_b32 s15, 0x20000")
    e("s_lshl_b32 s47, s45, 14"); e(f"s_add_u32 s47, s47, {WT}")
    e("v_lshl_add_u32 v11, v0, 4, s47")
    e("v_add_u32 v13, s47, v13"); e("v_add_u32 v15, s47, v15")
    e("s_lshl_b32 s43, s45, 8"); e("v_add_u32 v14, s43, v14")
    for n in range(32):
        s, m, i = n >> 3, (n >> 2) & 1, n & 3
        if n >= wf_win: e(f"s_waitcnt vmcnt({wf_win-1})")
        e(f"s_mov_b32 s40, {(32*s + 8*i) * 3584}")
        if not nogu: e(f"buffer_load_dwordx4 v[{128+4*n}:{131+4*n}], v10, {'s[8:11]' if m == 0 else 's[48:51]'}, s40 offen nt")
    e("s_waitcnt vmcnt(0)")
    hsync("L_hs1", HF)
    for s in range(4):
        for n in range(8): e(f"ds_write_b128 v11, v[{128+32*s+4*n}:{131+32*s+4*n}] offset:{1024*n}")
        e(f"ds_read_b128 v[16:19], v14 offset:{XA + 64*s}")
        e("s_waitcnt lgkmcnt(0)")
        for m in range(2):
            for ct in range(4):
                r = 128 + 32*s + 16*m + 4*ct
                e(f"ds_read_b64_tr_b16 v[{r}:{r+1}], v13 offset:{4096*m + 32*ct}")
                e(f"ds_read_b64_tr_b16 v[{r+2}:{r+3}], v13 offset:{4096*m + 32*ct + 512}")
            e("s_waitcnt lgkmcnt(0)")
            for ct in range(4):
                r = 128 + 32*s + 16*m + 4*ct
                acc = 64 + 16*m + 4*ct
                c = "0" if s == 0 else f"v[{acc}:{acc+3}]"
                e(f"v_mfma_f32_16x16x32_bf16 v[{acc}:{acc+3}], v[{r}:{r+3}], v[16:19], {c}")
    e("s_lshl_b32 s43, s2, 16"); e("s_lshl_b32 s46, s45, 8"); e("s_add_u32 s43, s43, s46")
    e("v_lshlrev_b32 v10, 10, v5"); e("v_lshl_add_u32 v10, v4, 4, v10"); e("v_add_u32 v10, s43, v10")
    e("v_and_b32 v6, 7, v4"); e("v_lshl_add_u32 v6, v5, 3, v6"); e("v_lshlrev_b32 v6, 4, v6"); e(f"v_add_u32 v6, {HP}, v6")
    e("s_lshl_b32 s43, s45, 12"); e("v_add_u32 v7, s43, v6")
    n8()
    for tl in range(8): e(f"ds_write_b128 v7, v[{64+4*tl}:{67+4*tl}] offset:{512*tl}")
    full()
    e("s_waitcnt lgkmcnt(0)")
    hsync_pub(HF2)
    for t in range(16):
        if t >= wf_win: e(f"s_waitcnt vmcnt({wf_win-1})")
        e(f"s_mov_b32 s40, {t*4096}")
        if not nodn: e(f"buffer_load_dwordx4 v[{128+4*t}:{131+4*t}], v10, s[12:15], s40 offen nt")
    hsync("L_hs2", HF2)
    for tl in range(8):
        for w in range(4): e(f"ds_read_b128 v[{192+4*w}:{195+4*w}], v6 offset:{4096*w + 512*tl}")
        e("s_waitcnt lgkmcnt(0)")
        for r in range(4):
            e(f"v_add_f32 v{192+r}, v{192+r}, v{196+r}"); e(f"v_add_f32 v{200+r}, v{200+r}, v{204+r}")
            e(f"v_add_f32 v{64+4*tl+r}, v{192+r}, v{200+r}")
    e("s_mov_b32 s43, " + f2u(-2 * 0.7978845608028654 * 1.4426950408889634))
    e("s_mov_b32 s46, " + f2u(-2 * 0.7978845608028654 * 1.4426950408889634 * 0.044715))
    e("v_mov_b32 v45, s43")
    e("v_and_b32 v8, 7, v4"); e(f"v_mul_u32_u24 v8, {HA_STRIDE}, v8"); e("v_lshl_add_u32 v9, v5, 3, v8"); e("v_lshl_add_u32 v8, v5, 4, v8")
    for ct in range(4):
        for rr in range(4):
            x, u = 64 + 4*ct + rr, 80 + 4*ct + rr
            rbf16(x, x); rbf16(u, u)
            e(f"v_mul_f32 v42, v{x}, v{x}")
            e("v_fma_f32 v42, v42, s46, v45")
            e(f"v_mul_f32 v42, v42, v{x}")
            e("v_exp_f32 v42, v42")
            e("v_add_f32 v42, 1.0, v42")
            e("v_rcp_f32 v42, v42")
            e(f"v_mul_f32 v42, v42, v{x}")
            rbf16(42, 42)
            e(f"v_mul_f32 v{x}, v42, v{u}")
        x = 64 + 4*ct
        e(f"v_cvt_pk_bf16_f32 v{x}, v{x}, v{x+1}"); e(f"v_cvt_pk_bf16_f32 v{x+1}, v{x+2}, v{x+3}")
        e(f"ds_write_b64 v9, v[{x}:{x+1}] offset:{HA + 32*ct}")
    e("s_waitcnt vmcnt(0)")
    for t in range(16): e(f"ds_write_b128 v11, v[{128+4*t}:{131+4*t}] offset:{1024*t}")
    e("s_waitcnt lgkmcnt(0)")
    e(f"ds_read_b128 v[16:19], v8 offset:{HA}"); e(f"ds_read_b128 v[20:23], v8 offset:{HA + 64}")
    for ct in range(8):
        for s in range(2):
            r = 128 + 8*ct + 4*s
            e(f"ds_read_b64_tr_b16 v[{r}:{r+1}], v15 offset:{8192*s + 32*ct}")
            e(f"ds_read_b64_tr_b16 v[{r+2}:{r+3}], v15 offset:{8192*s + 32*ct + 1024}")
        if ct & 1: e("s_waitcnt lgkmcnt(0)")
    for ct in range(8):
        acc = 64 + 4*ct
        e(f"v_mfma_f32_16x16x32_bf16 v[{acc}:{acc+3}], v[{128+8*ct}:{131+8*ct}], v[16:19], 0")
        e(f"v_mfma_f32_16x16x32_bf16 v[{acc}:{acc+3}], v[{132+8*ct}:{135+8*ct}], v[20:23], v[{acc}:{acc+3}]")
    e("s_lshl_b32 s43, s2, 14"); e("s_lshl_b32 s46, s45, 9"); e("s_add_u32 s43, s43, s46"); e(f"s_add_u32 s43, s43, {FPART}")
    e("v_and_b32 v6, 7, v4"); e("v_lshlrev_b32 v6, 11, v6"); e("v_lshl_add_u32 v6, v5, 4, v6"); e("v_add_u32 v6, s43, v6")
    e("s_lshl_b32 s43, s2, 7"); e("s_lshl_b32 s46, s45, 3"); e("s_add_u32 s43, s43, s46"); e(f"s_add_u32 s43, s43, {FFLAG}"); e("v_mov_b32 v8, s43")
    n8()
    for ct in range(8):
        if not nofp: e(f"global_store_dwordx4 v6, v[{64+4*ct}:{67+4*ct}], s[38:39] offset:{64*ct} sc1")
    e("s_waitcnt vmcnt(0)")
    e("s_mov_b64 exec, 1")
    e("global_store_dwordx2 v8, v[24:25], s[38:39] sc1")
    full()
    stamp(2)

    e("L_wo:")
    e("s_mov_b32 s8, s24"); e("s_mov_b32 s9, s25"); e("s_mov_b32 s10, 0x400000"); e("s_mov_b32 s11, 0x20000")
    e("s_lshl_b32 s43, s5, 17"); e("s_lshl_b32 s46, s45, 8"); e("s_add_u32 s43, s43, s46")
    e("v_lshlrev_b32 v2, 15, v5"); e("v_lshl_add_u32 v2, v4, 4, v2"); e("v_add_u32 v2, s43, v2")
    for t in range(32):
        if t >= wo_win: e(f"s_waitcnt vmcnt({wo_win-1})")
        if t % 4 == 0: e(f"s_mov_b32 s40, {t*1024}")
        if not nowo: e(f"buffer_load_dwordx4 v[{128+4*t}:{131+4*t}], v2, s[8:11], s40 offen offset:{(t&3)*1024} nt")
    stamp(3)

    def tagpoll(label, nload):
        if nopoll: return
        e(f"s_mov_b32 s44, {spin}")
        e(f"{label}:")
        for k in range(nload): e(f"global_load_dwordx2 v[{44+2*k}:{45+2*k}], v{40+k}, s[38:39] sc1")
        e("s_waitcnt vmcnt(0)")
        for k in range(nload):
            e(f"v_xor_b32 v{44+2*k}, v{44+2*k}, v24"); e(f"v_xor_b32 v{45+2*k}, v{45+2*k}, v25")
            e(f"v_or_b32 v{44+2*k}, v{44+2*k}, v{45+2*k}")
            if k: e(f"v_or_b32 v44, v44, v{44+2*k}")
        e("v_cmpx_ne_u32 vcc, 0, v44")
        e("s_sub_u32 s44, s44, 1")
        e(f"s_cbranch_execz {label}_ok")
        e(f"s_sleep {slp}")
        e("s_cmp_lg_u32 s44, 0")
        e(f"s_cbranch_scc1 {label}")
        e(f"{label}_ok:")
        full()
    e("s_cmp_ge_u32 s45, 2"); e("s_cbranch_scc1 L_nog")
    e("v_mov_b32 v40, 0")
    e(f"s_mov_b32 s44, {spin}")
    e("L_pg:")
    e(f"ds_read_b32 v41, v40 offset:{PG}")
    e("s_waitcnt lgkmcnt(0)")
    e("v_readfirstlane_b32 s46, v41")
    e("s_cmp_lg_u32 s46, 0"); e("s_cbranch_scc1 L_pg_ok")
    e("s_sleep 32")
    e("s_sub_u32 s44, s44, 1"); e("s_cmp_lg_u32 s44, 0"); e("s_cbranch_scc1 L_pg")
    e("L_pg_ok:")
    e("s_cmp_lg_u32 s45, 1"); e("s_cbranch_scc1 L_noepoch")
    e("s_cmp_lg_u32 s2, 0"); e("s_cbranch_scc1 L_noepoch")
    e("v_lshlrev_b32 v40, 7, v0"); e(f"v_add_u32 v40, {FLAG}, v40")
    for k in range(1, 4): e(f"v_add_u32 v{40+k}, {8192*k}, v40")
    tagpoll("L_pollE", 4)
    e(f"v_mov_b32 v40, {EPOCH}")
    e("s_mov_b64 exec, 1")
    e("global_store_dwordx2 v40, v[24:25], s[38:39] sc1")
    full()
    e("L_noepoch:")
    e("s_cmp_lg_u32 s45, 0"); e("s_cbranch_scc1 L_nog")
    e("s_lshl_b32 s43, s4, 12"); e(f"s_add_u32 s43, s43, {FLAG}")
    e("v_lshl_add_u32 v40, v0, 7, s43")
    e("v_subrev_u32 v41, 32, v0"); e(f"v_min_u32 v41, {NFFN-1}, v41")
    e("s_lshr_b32 s43, s5, 3"); e("s_lshl_b32 s43, s43, 3"); e(f"s_add_u32 s43, s43, {FFLAG}")
    e("v_lshl_add_u32 v41, v41, 7, s43")
    e("v_cmp_gt_u32 vcc, 32, v0")
    if not noffn: e("v_cndmask_b32 v40, v41, v40, vcc")
    else: e("v_and_b32 v41, 31, v0"); e("s_lshl_b32 s43, s4, 12"); e(f"s_add_u32 s43, s43, {FLAG}"); e("v_lshl_add_u32 v40, v41, 7, s43")
    tagpoll("L_pollG", 1)
    e("s_lshl_b32 s43, s4, 11"); e("s_lshl_b32 s46, s5, 6"); e("s_add_u32 s43, s43, s46"); e(f"s_add_u32 s43, s43, {FPART}")
    e("v_lshrrev_b32 v40, 2, v0"); e("v_lshlrev_b32 v40, 14, v40"); e("v_and_b32 v41, 3, v0"); e("v_lshl_add_u32 v40, v41, 4, v40")
    e("v_add_u32 v40, s43, v40"); e(f"v_add_u32 v41, {16*16384}, v40")
    for r in range(52, 56): e(f"v_mov_b32 v{r}, 0")
    if not nofr: e("global_load_dwordx4 v[48:51], v40, s[38:39] sc1")
    e("s_mov_b32 exec_hi, 0xffff")
    if not nofr: e("global_load_dwordx4 v[52:55], v41, s[38:39] sc1")
    full()
    e("s_waitcnt vmcnt(0)")
    for r in range(4): e(f"v_add_f32 v{48+r}, v{48+r}, v{52+r}")
    for ctrl in ("row_ror:4", "row_ror:8"):
        for r in range(4): dpp_add(48 + r, ctrl)
    for r in range(4): xswap("v_add_f32", 48 + r, 44 + r, 16)
    for r in range(4): xswap("v_add_f32", 48 + r, 44 + r, 32)
    for r in range(4):
        y = 48 + r
        rbf16(y, y)
        e(f"v_mul_f32 v42, s6, v{y}")
        e("v_exp_f32 v42, -v42")
        e("v_add_f32 v42, 1.0, v42")
        e("v_rcp_f32 v42, v42")
        e(f"v_mul_f32 v{y}, v42, v{y}")
        rbf16(y, y)
    e("v_lshlrev_b32 v8, 4, v0")
    e("s_mov_b64 exec, 15")
    e(f"ds_write_b128 v8, v[48:51] offset:{GV}")
    full()
    e("L_nog:")
    stamp(4)
    e("s_lshl_b32 s43, s2, 11"); e("s_lshl_b32 s46, s45, 9"); e("s_add_u32 s43, s43, s46"); e(f"s_add_u32 s43, s43, {OUTB}")
    e("v_lshlrev_b32 v12, 5, v4"); e("v_lshl_add_u32 v12, v5, 4, v12"); e("v_add_u32 v12, s43, v12")
    e("v_lshlrev_b32 v6, 3, v0")
    e("s_lshl_b32 s43, s45, 9")
    e("v_add_u32 v7, s43, v6")
    e("v_lshl_add_u32 v8, v5, 7, s43")
    e("v_mov_b32 v9, 0")
    e("v_mov_b32 v13, 0x7fc00000")
    e("s_waitcnt vmcnt(0) lgkmcnt(0)")
    stamp(5, True)
    e("s_setprio 3")
    e("s_barrier")
    e(f"ds_read_b128 v[16:19], v9 offset:{ML}")
    e(f"ds_read_b128 v[20:23], v9 offset:{ML+16}")
    for w in range(4): e(f"ds_read_b64 v[{24+2*w}:{25+2*w}], v6 offset:{OP + 512*w}")
    e("s_waitcnt lgkmcnt(4)")
    e("v_max3_f32 v40, v16, v17, v18"); e("v_max_f32 v40, v40, v19")
    for w in range(4): e(f"v_sub_f32 v{16+w}, v{16+w}, v40")
    for w in range(4): e(f"v_mul_f32 v{16+w}, s6, v{16+w}")
    for w in range(4): e(f"v_exp_f32 v{16+w}, v{16+w}")
    e("v_mul_f32 v41, v16, v20"); e("v_fmac_f32 v41, v17, v21"); e("v_fmac_f32 v41, v18, v22"); e("v_fmac_f32 v41, v19, v23")
    e("v_rcp_f32 v41, v41")
    e("s_waitcnt lgkmcnt(0)")
    e("v_mul_f32 v42, v16, v24"); e("v_mul_f32 v43, v16, v25")
    for w in range(1, 4):
        e(f"v_fmac_f32 v42, v{16+w}, v{24+2*w}"); e(f"v_fmac_f32 v43, v{16+w}, v{25+2*w}")
    e("v_mul_f32 v42, v42, v41"); e("v_mul_f32 v43, v43, v41")
    e("v_cvt_pk_bf16_f32 v42, v42, v42"); e("v_cvt_pk_bf16_f32 v43, v43, v43")
    e(f"ds_write_b64 v7, v[42:43] offset:{OD}")
    e("s_waitcnt lgkmcnt(0)")
    for j in range(8): e(f"ds_read_b128 v[{96+4*j}:{99+4*j}], v8 offset:{OD + 16*j}")
    for t in range(32):
        if t % 4 == 0: e(f"s_waitcnt lgkmcnt({7 - t//4})")
        onehot_step(96 + t, 128 + 4*t, 64, 72 + 4*(t & 3), first=(t == 0))
    for r in range(4):
        e(f"v_cmp_eq_u32 vcc, -1, v{64+r}")
        e(f"v_cndmask_b32 v{64+r}, v{64+r}, v13, vcc")
    lo32()
    e("global_store_dwordx4 v12, v[64:67], s[38:39] sc1")
    full()
    stamp(6)
    e("L_fin:")
    flush_stamps()
    e("L_end:")
    e("s_endpgm")
    e('.section .rodata,"a"')
    e(".p2align 6")
    e(f".amdhsa_kernel {NAME}")
    e(".amdhsa_next_free_vgpr 256")
    e(".amdhsa_next_free_sgpr 90")
    e(".amdhsa_accum_offset 256")
    e(".amdhsa_group_segment_fixed_size 0")
    e(".amdhsa_kernarg_size 96")
    e(".amdhsa_user_sgpr_count 2")
    e(".amdhsa_user_sgpr_kernarg_segment_ptr 1")
    e(".amdhsa_system_sgpr_workgroup_id_x 1")
    e(".end_amdhsa_kernel")
    return a.finish()

if __name__ == "__main__":
    cfg = eval("dict(" + (sys.argv[2] if len(sys.argv) > 2 else "") + ")")
    open(sys.argv[1], "w").write(gen(**cfg))
```
